```python
import torch

def _softmax(x, axis=-1):
    return torch.softmax(x, dim=axis)
def _gelu(x):
    return torch.nn.functional.gelu(x, approximate="tanh")
def _silu(x):
    return torch.nn.functional.silu(x)
def _sigmoid(x):
    return torch.sigmoid(x)
def _layernorm(x, axis=-1, eps=1e-5):
    m = x.mean(dim=axis, keepdim=True)
    v = x.var(dim=axis, keepdim=True, unbiased=False)
    return (x - m) / torch.sqrt(v + eps)
def _scatter_add(tgt, idx, src, axis=0):
    return tgt.clone().index_add_(axis, idx, src)
def _segment_sum(src, seg, n):
    out = torch.zeros((n,) + src.shape[1:], dtype=src.dtype)
    return out.index_add_(0, seg, src)
def _pad(x, pw):
    flat = tuple(v for pair in reversed(pw) for v in pair)
    return torch.nn.functional.pad(x, flat)

kernel_name = 'interleave_layers__grouped_kv_mqa__dense_activation_gelu__prompt'

def setup_inputs():

    _w = (lambda a: (lambda t: t.to(torch.bfloat16) if t.is_floating_point() else t)(torch.as_tensor(a)))
    def _A_setup():
        B, S, D, H = 1, 2048, 448, 16
        Dh = D // H
        return {
            "x": _w((lambda *s: torch.randn(*s, dtype=torch.bfloat16) * 0.05)(B, S, D)),
            "wq": _w((lambda *s: torch.randn(*s, dtype=torch.bfloat16) * 0.05)(D, H * Dh)),
            "wk": _w((lambda *s: torch.randn(*s, dtype=torch.bfloat16) * 0.05)(D, Dh)),
            "wv": _w((lambda *s: torch.randn(*s, dtype=torch.bfloat16) * 0.05)(D, Dh)),
            "wo": _w((lambda *s: torch.randn(*s, dtype=torch.bfloat16) * 0.05)(H * Dh, D)),
        }
    _A_in = _A_setup()

    def _B_setup():
        B, S, D, F = 1, 2048, 448, 1792
        return {
            "x": _w((lambda *s: torch.randn(*s, dtype=torch.bfloat16) * 0.05)(B, S, D)),
            "w1": _w((lambda *s: torch.randn(*s, dtype=torch.bfloat16) * 0.8)(D, F) * (D ** -0.5)),
            "b1": _w((lambda *s: torch.randn(*s, dtype=torch.bfloat16) * 12.8)(F) * 0.01),
            "w2": _w((lambda *s: torch.randn(*s, dtype=torch.bfloat16) * 0.2)(F, D) * (F ** -0.5)),
            "b2": _w((lambda *s: torch.randn(*s, dtype=torch.bfloat16) * 1.6)(D) * 0.01),
        }
    _B_in = _B_setup()

    return {
        "A_x": _A_in["x"],
        "A_wq": _A_in["wq"],
        "A_wk": _A_in["wk"],
        "A_wv": _A_in["wv"],
        "A_wo": _A_in["wo"],
        "B_x": _B_in["x"],
        "B_w1": _B_in["w1"],
        "B_b1": _B_in["b1"],
        "B_w2": _B_in["w2"],
        "B_b2": _B_in["b2"],
    }

def reference(A_x, A_wq, A_wk, A_wv, A_wo, B_x, B_w1, B_b1, B_w2, B_b2):
    def _A_ref(x, wq, wk, wv, wo):
        B, S, D = x.shape
        H = 16
        Dh = D // H
        q = (lambda x, *d: x.permute(*d))((x @ wq).reshape(B, S, H, Dh), 0, 2, 1, 3)
        k = x @ wk
        v = x @ wv
        scores = torch.einsum("bhqd,bkd->bhqk", q, k) * (Dh ** -0.5)
        p = _softmax(scores, axis=-1)
        o = torch.einsum("bhqk,bkd->bhqd", p, v)
        return (lambda x, *d: x.permute(*d))(o, 0, 2, 1, 3).reshape(B, S, H * Dh) @ wo

    def _B_ref(x, w1, b1, w2, b2):
        h = torch.einsum("bsd,df->bsf", x, w1) + b1
        h = _gelu(h)
        return torch.einsum("bsf,fd->bsd", h, w2) + b2

    x = A_x
    x = x + _A_ref(_layernorm(x, axis=-1), A_wq, A_wk, A_wv, A_wo)
    x = x + _B_ref(_layernorm(x, axis=-1), B_w1, B_b1, B_w2, B_b2)
    x = x + _A_ref(_layernorm(x, axis=-1), A_wq, A_wk, A_wv, A_wo)
    x = x + _B_ref(_layernorm(x, axis=-1), B_w1, B_b1, B_w2, B_b2)
    return x
```

```python
import re

REG_RE = re.compile(r'(?<![\w.])([vas])(?:(\d+)|\[(\d+):(\d+)\])(?![\w])')
TRANS = ('v_exp_', 'v_log_', 'v_rcp_', 'v_rsq_', 'v_sqrt_', 'v_sin_', 'v_cos_')


def regs_of(op):
    out = set()
    op = op.strip()
    o = op.replace('|', '').replace('-', '').replace('abs(', '').replace(')', '').replace('neg(', '')
    if o == 'vcc':
        return {('s', 106), ('s', 107)}
    if o == 'vcc_lo':
        return {('s', 106)}
    if o == 'vcc_hi':
        return {('s', 107)}
    if o == 'exec':
        return {('s', 126), ('s', 127)}
    if o == 'exec_lo':
        return {('s', 126)}
    if o == 'exec_hi':
        return {('s', 127)}
    if o == 'm0':
        return {('s', 124)}
    m = REG_RE.fullmatch(o)
    if m:
        k = m.group(1)
        if m.group(2) is not None:
            out.add((k, int(m.group(2))))
        else:
            for i in range(int(m.group(3)), int(m.group(4)) + 1):
                out.add((k, i))
    return out


VCC = {('s', 106), ('s', 107)}
EXEC = {('s', 126), ('s', 127)}
M0 = {('s', 124)}


class Ins:
    __slots__ = ('text', 'mn', 'ops', 'mods', 'kind', 'wr', 'rd', 'passes', 'A', 'B', 'C', 'label', 'target',
                 'trans', 'dpp', 'dl', 'lds_dma', 'store_data', 'wide_store', 'states', 'sgpr_rd_vmem', 'comment')

    def __init__(self, text):
        self.text = text
        self.label = None
        self.target = None
        self.kind = 'other'
        self.wr = set()
        self.rd = set()
        self.passes = 0
        self.A = self.B = self.C = set()
        self.trans = self.dpp = self.dl = self.lds_dma = self.wide_store = False
        self.store_data = set()
        self.states = 1
        t = text.split(';')[0].strip()
        if not t:
            self.kind = 'blank'
            self.states = 0
            self.mn = ''
            return
        if t.endswith(':'):
            self.kind = 'label'
            self.label = t[:-1]
            self.states = 0
            self.mn = ''
            return
        if t.startswith('.'):
            self.kind = 'directive'
            self.states = 0
            self.mn = t
            return
        parts = t.split(None, 1)
        mn = parts[0]
        self.mn = mn
        rest = parts[1] if len(parts) > 1 else ''
        ops = []
        cur = ''
        depth = 0
        for ch in rest:
            if ch == '[' or ch == '(':
                depth += 1
            if ch == ']' or ch == ')':
                depth -= 1
            if ch == ',' and depth == 0:
                ops.append(cur.strip())
                cur = ''
            else:
                cur += ch
        if cur.strip():
            ops.append(cur.strip())
        mods = []
        if ops:
            lp = ops[-1].split()
            if lp:
                ops[-1] = lp[0]
                mods = lp[1:]
        self.ops = ops
        self.mods = mods
        R = [regs_of(o) for o in ops]
        if mn.startswith('v_mfma'):
            self.kind = 'mfma'
            self.passes = 8 if '32x32x16' in mn else 4 if '16x16x32' in mn else None
            assert self.passes, mn
            self.wr = R[0]
            self.A, self.B, self.C = R[1], R[2], R[3]
            self.rd = R[1] | R[2] | R[3]
        elif mn.startswith('v_'):
            self.kind = 'valu'
            self.trans = mn.startswith(TRANS)
            self.dpp = '_dpp' in mn or any(m.startswith(('row_', 'quad_perm', 'wave_')) for m in mods)
            self.dl = mn.startswith('v_dot')
            if mn.startswith('v_permlane') and 'swap' in mn:
                self.wr = R[0] | R[1]
                self.rd = R[0] | R[1]
            elif mn.startswith('v_cmpx'):
                self.wr = R[0] | EXEC
                self.rd = set().union(*R[1:])
            elif mn.startswith(('v_add_co', 'v_sub_co', 'v_subrev_co', 'v_addc_co', 'v_subb_co', 'v_mad_u64_u32', 'v_div_scale')):
                self.wr = R[0] | R[1]
                self.rd = set().union(*R[2:])
            elif mn == 'v_nop':
                pass
            else:
                self.wr = R[0]
                self.rd = set().union(*R[1:]) if len(R) > 1 else set()
                if mn.startswith(('v_fmac', 'v_dot2c', 'v_dot4c', 'v_pk_fmac', 'v_writelane')) or 'UNUSED_PRESERVE' in t or self.dpp:
                    self.rd |= R[0]
                if mn.startswith('v_cndmask') and len(ops) == 3:
                    self.rd |= VCC
        elif mn.startswith(('buffer_', 'global_', 'flat_')):
            self.kind = 'vmem'
            is_lds = 'lds' in mods or '_lds_' in mn
            if 'load' in mn:
                if is_lds:
                    self.lds_dma = True
                    self.rd = set().union(*R) | M0
                else:
                    self.wr = R[0]
                    self.rd = set().union(*R[1:])
            elif 'store' in mn or 'atomic' in mn:
                self.rd = set().union(*R)
                di = 0 if mn.startswith('buffer_') else 1
                self.store_data = R[di]
                self.wide_store = len(R[di]) >= 3
                if 'atomic' in mn and 'sc0' in mods:
                    self.wr = R[0]
            else:
                pass
        elif mn.startswith('ds_'):
            self.kind = 'ds'
            if mn.startswith(('ds_read', 'ds_bpermute', 'ds_permute', 'ds_swizzle')) or '_rtn' in mn:
                self.wr = R[0]
                self.rd = set().union(*R[1:])
            else:
                self.rd = set().union(*R)
        elif mn.startswith('s_'):
            if mn.startswith(('s_load', 's_buffer_load', 's_memtime', 's_memrealtime')):
                self.kind = 'smem'
                self.wr = R[0]
                self.rd = set().union(*R[1:]) if len(R) > 1 else set()
            elif mn == 's_nop':
                self.kind = 'nop'
                self.states = int(ops[0], 0) + 1
            elif mn == 's_waitcnt':
                self.kind = 'wait'
            elif mn in ('s_branch',) or mn.startswith('s_cbranch'):
                self.kind = 'branch'
                self.target = ops[0]
            elif mn in ('s_endpgm',):
                self.kind = 'end'
            elif mn in ('s_barrier', 's_setprio', 's_sleep'):
                self.kind = 'salu'
            elif mn.startswith(('s_cmp', 's_bitcmp')):
                self.kind = 'salu'
                self.rd = set().union(*R)
            else:
                self.kind = 'salu'
                self.wr = R[0] if R else set()
                self.rd = set().union(*R[1:]) if len(R) > 1 else set()
                if 'saveexec' in mn:
                    self.wr = self.wr | EXEC
                    self.rd = self.rd | EXEC
                if mn.startswith(('s_addk', 's_mulk')):
                    self.rd |= R[0]
        else:
            raise ValueError('unknown instruction: ' + text)


def vg(s):
    return {r for r in s if r[0] in 'va'}


def sg(s):
    return {r for r in s if r[0] == 's'}


def need_states(p, c):
    n = 0
    if p.kind == 'valu':
        pw_v = vg(p.wr)
        pw_s = sg(p.wr)
        if c.kind == 'mfma' and pw_v & c.rd:
            n = max(n, 3 if p.dl else 2)
        if c.kind == 'mfma' and pw_s & EXEC:
            n = max(n, 4)
        if c.kind == 'valu':
            if p.trans and not c.trans and pw_v & (c.rd):
                n = max(n, 1)
            if p.trans and c.trans and pw_v & c.rd:
                n = max(n, 1)
            if p.dl and pw_v & (c.rd | c.wr):
                same = (p.mn == c.mn)
                srcab = set()
                if same:
                    Rr = [regs_of(o) for o in c.ops]
                    srcab = Rr[1] | Rr[2]
                if (not same) or (pw_v & srcab):
                    n = max(n, 3)
            if c.dpp and pw_v & c.rd:
                n = max(n, 2)
            if c.dpp and pw_s & EXEC:
                n = max(n, 5)
            if c.mn.startswith('v_permlane') and pw_v & c.rd:
                n = max(n, 2)
            if c.mn.startswith('v_permlane') and pw_s & EXEC:
                n = max(n, 4)
            if c.mn.startswith(('v_readlane', 'v_readfirstlane')) and pw_v & c.rd:
                n = max(n, 1)
            if c.mn.startswith(('v_readlane', 'v_readfirstlane', 'v_writelane')) and pw_s & EXEC:
                n = max(n, 4)
            if pw_s & sg(c.rd):
                n = max(n, 4 if c.mn.startswith(('v_readlane', 'v_writelane', 'v_div_fmas')) else 2)
            if ('sdwa' in p.mn or 'op_sel' in p.text) and pw_v & (c.rd | c.wr):
                n = max(n, 1)
        if c.kind == 'vmem' and pw_s & sg(c.rd):
            n = max(n, 5)
        if p.dl and c.kind in ('vmem', 'ds') and pw_v & c.rd:
            n = max(n, 3)
        if c.kind in ('salu', 'branch', 'smem') and pw_s & sg(c.rd):
            n = max(n, 1)
        if c.kind == 'branch' and c.mn in ('s_cbranch_vccz', 's_cbranch_vccnz') and pw_s & VCC:
            n = max(n, 5)
        if c.kind == 'branch' and c.mn in ('s_cbranch_execz', 's_cbranch_execnz') and pw_s & EXEC:
            n = max(n, 5)
    if p.kind == 'mfma':
        D = p.wr
        big = {4: 8, 8: 12}[p.passes]
        if c.kind == 'mfma':
            if D & (c.A | c.B):
                n = max(n, big)
            if D & c.C:
                if not (c.C == D and c.passes == p.passes):
                    n = max(n, {4: 6, 8: 10}[p.passes])
            elif D & c.wr:
                n = max(n, {4: 6, 8: 10}[p.passes])
        elif c.kind == 'valu':
            if D & (c.rd | c.wr):
                n = max(n, big)
            if p.C & vg(c.wr):
                n = max(n, {4: 3, 8: 7}[p.passes])
        elif c.kind in ('vmem', 'ds'):
            if D & (c.rd | c.wr):
                n = max(n, big)
            if p.C & vg(c.wr):
                n = max(n, {4: 3, 8: 7}[p.passes])
    if p.kind == 'salu' and p.wr & M0:
        if c.kind == 'vmem' and c.lds_dma:
            n = max(n, 1)
        if c.kind == 'ds' and 'addtid' in c.mn:
            n = max(n, 1)
    if p.kind == 'vmem' and p.wide_store:
        if p.store_data & vg(c.wr):
            n = max(n, 2 if c.kind in ('valu', 'mfma') else 1)
    if p.kind == 'ds' and p.mn.startswith(('ds_write_b128', 'ds_write_b96')):
        pass
    return n


class Prog:
    def __init__(self):
        self.ins = []

    def __call__(self, text):
        for line in text.split('\n'):
            line = line.strip()
            if line:
                self.ins.append(Ins(line))

    def label(self, name):
        self.ins.append(Ins(name + ':'))

    def traces(self, ins):
        lab = {x.label: i for i, x in enumerate(ins) if x.kind == 'label'}
        starts = [i for i, x in enumerate(ins) if x.kind == 'label' and x.label.endswith('_kernel')]
        out = []

        def run(start, take):
            tr = []
            i = start
            cnt = {}
            steps = 0
            while i < len(ins) and steps < 400000:
                steps += 1
                x = ins[i]
                tr.append(i)
                if x.kind == 'end':
                    break
                if x.kind == 'branch':
                    t = lab[x.target]
                    if x.mn == 's_branch':
                        if t <= i:
                            cnt[i] = cnt.get(i, 0) + 1
                            if cnt[i] > 2:
                                break
                        i = t
                        continue
                    if t <= i:
                        cnt[i] = cnt.get(i, 0) + 1
                        if cnt[i] <= 2:
                            i = t
                            continue
                        cnt[i] = 0
                    elif i in take:
                        i = t
                        continue
                i += 1
            return tr

        for s in starts:
            main = run(s, set())
            out.append(main)
            seen = set(main)
            todo = [i for i in main if ins[i].kind == 'branch' and ins[i].mn != 's_branch' and lab[ins[i].target] > i]
            done = set()
            work = [(b, (b,)) for b in dict.fromkeys(todo)]
            while work:
                b, takes = work.pop()
                if b in done:
                    continue
                done.add(b)
                tr = run(s, set(takes))
                out.append(tr)
                for i in tr:
                    if i not in seen:
                        seen.add(i)
                        if ins[i].kind == 'branch' and ins[i].mn != 's_branch' and lab[ins[i].target] > i and i not in done:
                            work.append((i, takes + (i,)))
        return out

    def auto_waits(self):
        for _ in range(50):
            ins = self.ins
            need = {}
            for tr in self.traces(ins):
                vq = []
                lq = []
                for i in tr:
                    x = ins[i]
                    if x.kind in ('blank', 'label', 'directive'):
                        continue
                    if x.kind == 'wait':
                        m = re.search(r'vmcnt\((\d+)\)', x.text)
                        if m:
                            n = int(m.group(1))
                            vq = vq[len(vq) - n:] if n < len(vq) else vq
                            if n == 0:
                                vq = []
                        m = re.search(r'lgkmcnt\((\d+)\)', x.text)
                        if m:
                            n = int(m.group(1))
                            if n == 0:
                                lq = []
                            elif not any(k == 'smem' for k, _ in lq):
                                lq = lq[len(lq) - n:] if n < len(lq) else lq
                        continue
                    touch = x.rd | x.wr
                    vm = None
                    for j in range(len(vq) - 1, -1, -1):
                        if vq[j] & touch:
                            if x.kind == 'vmem' and not (vq[j] & x.rd):
                                continue
                            vm = len(vq) - 1 - j
                            break
                    lg = None
                    for j in range(len(lq) - 1, -1, -1):
                        if lq[j][1] & touch:
                            if x.kind == 'ds' and lq[j][0] == 'ds' and not (lq[j][1] & x.rd):
                                continue
                            lg = len(lq) - 1 - j
                            if any(k == 'smem' for k, _ in lq):
                                lg = 0
                            break
                    if vm is not None or lg is not None:
                        e = need.setdefault(i, [None, None])
                        if vm is not None:
                            vm = min(vm, 63)
                            e[0] = vm if e[0] is None else min(e[0], vm)
                            vq = vq[len(vq) - vm:] if vm else []
                        if lg is not None:
                            lg = min(lg, 15)
                            e[1] = lg if e[1] is None else min(e[1], lg)
                            lq = lq[len(lq) - lg:] if lg else []
                    if x.kind == 'vmem':
                        vq.append(set(x.wr))
                    elif x.kind == 'ds':
                        lq.append(('ds', set(x.wr)))
                    elif x.kind == 'smem':
                        lq.append(('smem', set(x.wr)))
            if not need:
                return
            new = []
            for i, x in enumerate(ins):
                if i in need:
                    vm, lg = need[i]
                    t = 's_waitcnt'
                    if vm is not None:
                        t += f' vmcnt({vm})'
                    if lg is not None:
                        t += f' lgkmcnt({lg})'
                    new.append(Ins(t))
                new.append(x)
            self.ins = new
        raise RuntimeError('auto_waits did not converge')

    def auto_nops(self):
        for _ in range(50):
            ins = self.ins
            need = {}
            for tr in self.traces(ins):
                real = [i for i in tr if ins[i].states > 0]
                for pos, i in enumerate(real):
                    c = ins[i]
                    if c.kind in ('nop', 'wait', 'end'):
                        continue
                    dist = need.get(i, 0)
                    q = pos - 1
                    req = 0
                    while q >= 0 and dist < 20:
                        p = ins[real[q]]
                        n = need_states(p, c)
                        if n > dist:
                            req = max(req, n - dist)
                        dist += p.states + need.get(real[q], 0)
                        q -= 1
                    if req:
                        need[i] = need.get(i, 0) + req
            if not need:
                return
            new = []
            for i, x in enumerate(ins):
                if i in need:
                    n = need[i]
                    while n > 0:
                        k = min(n, 16)
                        new.append(Ins(f's_nop {k - 1}'))
                        n -= k
                new.append(x)
            self.ins = new
        raise RuntimeError('auto_nops did not converge')

    def finish(self):
        self.auto_waits()
        self.auto_nops()

    def text(self):
        out = []
        for x in self.ins:
            if x.kind in ('label', 'directive'):
                out.append(x.text)
            else:
                out.append('    ' + x.text)
        return '\n'.join(out) + '\n'

    def max_regs(self):
        mx = {'v': -1, 'a': -1, 's': -1}
        for x in self.ins:
            for k, i in (x.rd | x.wr):
                if k == 's' and i >= 102:
                    continue
                mx[k] = max(mx[k], i)
        return mx


def vr(b, n=1, k='v'):
    return f'{k}{b}' if n == 1 else f'{k}[{b}:{b + n - 1}]'


def sr(b, n=1):
    return vr(b, n, 's')


def ar(b, n=1):
    return vr(b, n, 'a')
```

```python
import math
import struct
import sys
from asmlib import Prog, vr, sr, ar

NAME = 'interleave_layers__grouped_kv_mqa__dense_activation_gelu__prompt'
S, D, H, DH, F = 2048, 448, 16, 28, 1792
KS = D // 32
KB = F // 32


def f32(x):
    return '0x%08x' % struct.unpack('<I', struct.pack('<f', x))[0]


_off = 0


def alloc(n):
    global _off
    o = _off
    _off += (n + 4095) // 4096 * 4096
    return o


ACT = 128 * KS * 1024
WS_XF0 = alloc(ACT)
WS_WQKV = alloc(8 * KS * 4 * 1024)
WS_CQKV = alloc(512 * 4)
WS_WO = alloc(7 * KS * 4 * 1024)
WS_W1 = alloc(16 * KS * 7 * 1024 + 4096)
WS_C1 = alloc(F * 4)
WS_W2 = alloc(7 * KB * 4 * 1024)
WS_X2F = alloc(ACT)
LAY = []
for L in range(2):
    LAY.append(dict(QF=alloc(64 * 16 * 2048), KV=alloc(64 * 4096), OF=alloc(ACT), X1F=alloc(ACT),
                    HF=alloc(128 * KB * 1024)))
WS_END = _off

K_AX, K_WQ, K_WK, K_WV, K_WO, K_BX, K_W1, K_B1, K_W2, K_B2, K_OUT, K_DBG, K_WS = [8 * i for i in range(13)]

QSCALE = DH ** -0.5 * math.log2(math.e)

kernels = []
launches = []


def srd(p, base, ptr, nbytes):
    p(f's_mov_b32 s{base}, s{ptr}')
    p(f's_and_b32 s{base + 1}, s{ptr + 1}, 0xffff')
    p(f's_mov_b32 s{base + 2}, {nbytes}')
    p(f's_mov_b32 s{base + 3}, 0x20000')


def entry(p, label):
    p('.p2align 8')
    p(f'.globl {label}')
    p(f'.type {label},@function')
    p.label(label)


def lane_setup(p):
    p('v_lshrrev_b32 v1, 6, v0')
    p('v_readfirstlane_b32 s8, v1')
    p('v_and_b32 v1, 63, v0')
    p('v_lshlrev_b32 v2, 4, v1')
    p('v_and_b32 v3, 15, v1')
    p('v_lshrrev_b32 v4, 4, v1')


def allreduce_g(p, v, t, op='v_add_f32'):
    p(f'v_mov_b32 v{t}, v{v}')
    p(f'v_permlane16_swap_b32 v{v}, v{t}')
    p(f'{op} v{v}, v{v}, v{t}')
    p(f'v_mov_b32 v{t}, v{v}')
    p(f'v_permlane32_swap_b32 v{v}, v{t}')
    p(f'{op} v{v}, v{v}, v{t}')


def gen_prep(p):
    NU = 412
    NWG = NU // 4
    entry(p, 'prep_kernel')
    p(f's_cmp_ge_u32 s2, {NWG}')
    p('s_cbranch_scc1 prep_end')
    p('s_load_dwordx16 s[16:31], s[0:1], 0')
    p('s_load_dwordx4 s[32:35], s[0:1], 64')
    p(f's_load_dwordx2 s[36:37], s[0:1], {K_WS}')
    lane_setup(p)
    p('s_lshl_b32 s9, s2, 2')
    p('s_add_u32 s9, s9, s8')
    srd(p, 4, 36, WS_END)
    p('s_cmp_ge_u32 s9, 128')
    p('s_cbranch_scc1 prep_w')
    srd(p, 12, 16, S * D * 2)
    p('v_mul_u32_u24 v5, 896, v3')
    p('v_lshl_add_u32 v5, v4, 3, v5')
    p('s_mul_i32 s10, s9, 14336')
    for ks in range(KS):
        p(f'buffer_load_dwordx2 v[{8 + 4 * ks}:{9 + 4 * ks}], v5, s[12:15], s10 offen offset:{64 * ks}')
        p(f'buffer_load_dwordx2 v[{10 + 4 * ks}:{11 + 4 * ks}], v5, s[12:15], s10 offen offset:{64 * ks + 32}')
    p(f's_add_u32 s10, s10, {WS_XF0}')
    for ks in range(KS):
        if ks and ks % 4 == 0:
            p('s_add_u32 s10, s10, 4096')
        p(f'buffer_store_dwordx4 v[{8 + 4 * ks}:{11 + 4 * ks}], v2, s[4:7], s10 offen offset:{1024 * (ks % 4)}')
    p('s_endpgm')
    p.label('prep_w')
    p('s_mov_b32 s43, 0')
    p('s_mov_b32 s47, 0')
    p('s_mov_b32 s46, 0')
    p('s_cmp_ge_u32 s9, 156')
    p('s_cbranch_scc1 prep_wk')
    p('s_sub_u32 s10, s9, 128')
    srd(p, 12, 18, D * D * 2)
    p('s_mov_b32 s40, 896')
    p('s_lshl_b32 s41, s10, 4')
    p('s_mov_b32 s42, 448')
    p('s_lshr_b32 s11, s10, 2')
    p(f's_mul_i32 s44, s11, {KS * 4096}')
    p('s_and_b32 s11, s10, 3')
    p('s_lshl_b32 s11, s11, 10')
    p('s_add_u32 s44, s44, s11')
    p(f's_add_u32 s44, s44, {WS_WQKV}')
    p('s_mov_b32 s45, 4096')
    p('s_lshl_b32 s46, s10, 6')
    p(f's_add_u32 s46, s46, {WS_CQKV}')
    p('s_branch prep_go')
    p.label('prep_wk')
    p('s_cmp_ge_u32 s9, 160')
    p('s_cbranch_scc1 prep_wo')
    p('s_sub_u32 s10, s9, 156')
    srd(p, 12, 20, D * DH * 2)
    p('s_cmp_ge_u32 s10, 2')
    p('s_cbranch_scc0 prep_wk2')
    srd(p, 12, 22, D * DH * 2)
    p.label('prep_wk2')
    p('s_mov_b32 s40, 56')
    p('s_and_b32 s41, s10, 1')
    p('s_lshl_b32 s41, s41, 4')
    p('s_mov_b32 s42, 28')
    p('s_lshl_b32 s44, s10, 10')
    p(f's_add_u32 s44, s44, {WS_WQKV + 7 * KS * 4096}')
    p('s_mov_b32 s45, 4096')
    p('s_lshl_b32 s46, s10, 6')
    p(f's_add_u32 s46, s46, {WS_CQKV + 448 * 4}')
    p('s_branch prep_go')
    p.label('prep_wo')
    p('s_cmp_ge_u32 s9, 188')
    p('s_cbranch_scc1 prep_w1')
    p('s_sub_u32 s10, s9, 160')
    srd(p, 12, 24, D * D * 2)
    p('s_mov_b32 s40, 896')
    p('s_lshl_b32 s41, s10, 4')
    p('s_mov_b32 s42, 448')
    p('s_lshr_b32 s11, s10, 2')
    p(f's_mul_i32 s44, s11, {KS * 4096}')
    p('s_and_b32 s11, s10, 3')
    p('s_lshl_b32 s11, s11, 10')
    p('s_add_u32 s44, s44, s11')
    p(f's_add_u32 s44, s44, {WS_WO}')
    p('s_mov_b32 s45, 4096')
    p('s_branch prep_go')
    p.label('prep_w1')
    p('s_cmp_ge_u32 s9, 300')
    p('s_cbranch_scc1 prep_w2')
    p('s_sub_u32 s10, s9, 188')
    srd(p, 12, 28, D * F * 2)
    p('s_mov_b32 s40, 3584')
    p('s_lshl_b32 s41, s10, 4')
    p('s_mov_b32 s42, 1792')
    p('s_mul_i32 s11, s10, 147')
    p('s_lshr_b32 s11, s11, 10')
    p(f's_mul_i32 s44, s11, {KS * 7168}')
    p('s_mul_i32 s11, s11, 7')
    p('s_sub_u32 s11, s10, s11')
    p('s_lshl_b32 s11, s11, 10')
    p('s_add_u32 s44, s44, s11')
    p(f's_add_u32 s44, s44, {WS_W1}')
    p('s_mov_b32 s45, 7168')
    p('s_lshl_b32 s46, s10, 6')
    p(f's_add_u32 s46, s46, {WS_C1}')
    p('s_branch prep_go')
    p.label('prep_w2')
    p('s_sub_u32 s10, s9, 300')
    srd(p, 12, 32, F * D * 2)
    p('s_mov_b32 s40, 896')
    p('s_lshr_b32 s11, s10, 2')
    p('s_lshl_b32 s41, s11, 4')
    p('s_mov_b32 s42, 448')
    p('s_and_b32 s43, s10, 3')
    p(f's_mul_i32 s44, s43, {14 * 4096}')
    p('s_mul_i32 s43, s43, 448')
    p('s_and_b32 s10, s11, 3')
    p('s_lshl_b32 s10, s10, 10')
    p('s_add_u32 s44, s44, s10')
    p('s_lshr_b32 s11, s11, 2')
    p(f's_mul_i32 s11, s11, {KB * 4096}')
    p('s_add_u32 s44, s44, s11')
    p(f's_add_u32 s44, s44, {WS_W2}')
    p('s_mov_b32 s45, 4096')
    p('s_mov_b32 s47, 1')
    p.label('prep_go')
    p('v_add_u32 v5, s41, v3')
    p('v_lshlrev_b32 v6, 2, v4')
    p('v_mul_lo_u32 v6, v6, s40')
    p('v_lshl_add_u32 v64, v5, 1, v6')
    p('v_mov_b32 v7, 0x7ff00000')
    p('v_cmp_gt_u32 vcc, s42, v5')
    p('v_cndmask_b32 v64, v7, v64, vcc')
    p('v_add_u32 v65, s40, v64')
    p('v_add_u32 v66, s40, v65')
    p('v_add_u32 v67, s40, v66')
    p('s_mul_i32 s10, s43, s40')
    p('s_lshl_b32 s11, s40, 4')
    for hs in range(28):
        r = 8 + 2 * hs
        p(f'buffer_load_ushort v{r}, v64, s[12:15], s10 offen')
        p(f'buffer_load_ushort v{r + 72}, v65, s[12:15], s10 offen')
        p(f'buffer_load_ushort v{r + 1}, v66, s[12:15], s10 offen')
        p(f'buffer_load_ushort v{r + 73}, v67, s[12:15], s10 offen')
        p('s_add_u32 s10, s10, s11')
    for r in range(8, 64):
        p(f'v_lshl_or_b32 v{r}, v{r + 72}, 16, v{r}')
    p('s_cmp_eq_u32 s47, 1')
    p('s_cbranch_scc1 prep_st2')
    p('v_mov_b32 v68, 0x3f803f80')
    p('v_mov_b32 v69, 0x3f803f80')
    p('v_mov_b32 v70, 0x3f803f80')
    p('v_mov_b32 v71, 0x3f803f80')
    for i in range(KS):
        c = '0' if i == 0 else 'v[72:75]'
        p(f'v_mfma_f32_16x16x32_bf16 v[72:75], v[{8 + 4 * i}:{11 + 4 * i}], v[68:71], {c}')
        p(f'buffer_store_dwordx4 v[{8 + 4 * i}:{11 + 4 * i}], v2, s[4:7], s44 offen')
        p('s_add_u32 s44, s44, s45')
    p('s_cmp_eq_u32 s46, 0')
    p('s_cbranch_scc1 prep_end')
    p('v_lshlrev_b32 v5, 4, v4')
    p('v_cmp_eq_u32 vcc, 0, v3')
    p('v_cndmask_b32 v5, v7, v5, vcc')
    p('buffer_store_dwordx4 v[72:75], v5, s[4:7], s46 offen')
    p('s_endpgm')
    p.label('prep_st2')
    for u in range(2):
        b = 8 + 28 * u
        for j in range(3):
            p(f'buffer_store_dwordx4 v[{b + 4 * j}:{b + 4 * j + 3}], v2, s[4:7], s44 offen')
            p('s_add_u32 s44, s44, s45')
        for j in range(3):
            p(f'buffer_store_dwordx4 v[{b + 14 + 4 * j}:{b + 14 + 4 * j + 3}], v2, s[4:7], s44 offen')
            p('s_add_u32 s44, s44, s45')
        p(f'buffer_store_dwordx2 v[{b + 12}:{b + 13}], v2, s[4:7], s44 offen')
        p(f'buffer_store_dwordx2 v[{b + 26}:{b + 27}], v2, s[4:7], s44 offen offset:8')
        p('s_add_u32 s44, s44, s45')
    p.label('prep_end')
    p('s_endpgm')
    kernels.append(('prep_kernel', 136, 136, 48))
    return NWG


def ws_srd(p):
    p(f's_load_dwordx2 s[10:11], s[0:1], {K_WS}')


def rb_cg_64(p):
    p('s_and_b32 s12, s2, 7')
    p('s_lshl_b32 s12, s12, 2')
    p('s_lshr_b32 s13, s2, 3')
    p('s_and_b32 s13, s13, 3')
    p('s_add_u32 s12, s12, s13')
    p('s_lshr_b32 s13, s2, 5')


def stats_finish(p, s1, s2, t, mu, rs):
    allreduce_g(p, s1, t)
    allreduce_g(p, s2, t)
    p(f'v_mul_f32 v{mu}, {f32(1.0 / D)}, v{s1}')
    p(f'v_mul_f32 v{t}, v{mu}, v{mu}')
    p(f'v_mov_b32 v{rs}, {f32(1.0 / D)}')
    p(f'v_fma_f32 v{t}, v{s2}, v{rs}, -v{t}')
    p(f'v_max_f32 v{t}, 0, v{t}')
    p(f'v_add_f32 v{t}, {f32(1e-5)}, v{t}')
    p(f'v_rsq_f32 v{rs}, v{t}')


def gen_qkv(p):
    entry(p, 'qkv2_kernel')
    p(f's_mov_b32 s20, {WS_X2F}')
    p(f's_mov_b32 s21, {LAY[1]["QF"]}')
    p(f's_mov_b32 s22, {LAY[1]["KV"]}')
    p('s_branch qkv_body')
    entry(p, 'qkv1_kernel')
    p(f's_mov_b32 s20, {WS_XF0}')
    p(f's_mov_b32 s21, {LAY[0]["QF"]}')
    p(f's_mov_b32 s22, {LAY[0]["KV"]}')
    p.label('qkv_body')
    p('s_cmp_ge_u32 s2, 256')
    p('s_cbranch_scc1 qkv_end')
    ws_srd(p)
    lane_setup(p)
    rb_cg_64(p)
    XB = 16
    ACC = 72
    WF = 88
    CS = 120
    S1a, S1b, S2a, S2b, T, MU, RS = 8, 9, 10, 11, 12, 13, 14
    p('s_lshl_b32 s14, s12, 2')
    p('s_add_u32 s14, s14, s8')
    p('s_mul_i32 s15, s14, 14336')
    p('s_add_u32 s15, s15, s20')
    p(f's_mul_i32 s16, s13, {KS * 4096}')
    p(f's_add_u32 s16, s16, {WS_WQKV}')
    p('s_lshl_b32 s17, s8, 10')
    p('v_add_u32 v5, s17, v2')
    p('s_mov_b32 m0, s17')
    srd(p, 4, 10, WS_END)
    for ks in range(KS):
        p('buffer_load_dwordx4 v5, s[4:7], s16 offen lds')
        p('s_add_u32 m0, m0, 4096')
        p('s_add_u32 s16, s16, 4096')
        if ks and ks % 4 == 0:
            p('s_add_u32 s15, s15, 4096')
        p(f'buffer_load_dwordx4 {vr(XB + 4 * ks, 4)}, v2, s[4:7], s15 offen offset:{1024 * (ks % 4)}')
    p('s_lshl_b32 s18, s13, 8')
    p(f's_add_u32 s18, s18, {WS_CQKV}')
    p('v_lshlrev_b32 v6, 4, v4')
    for nt in range(4):
        p(f'buffer_load_dwordx4 {vr(CS + 4 * nt, 4)}, v6, s[4:7], s18 offen offset:{64 * nt}')
    p('v_lshlrev_b32 v6, 2, v3')
    p('buffer_load_dword v136, v6, s[4:7], s18 offen offset:128')
    p('buffer_load_dword v137, v6, s[4:7], s18 offen offset:192')
    for r in (S1a, S1b, S2a, S2b):
        p(f'v_mov_b32 v{r}, 0')
    p('s_mov_b32 s19, 0x3f803f80')
    p('s_waitcnt vmcnt(6)')
    p('s_barrier')
    p('s_cmp_eq_u32 s13, 7')
    p('s_cbranch_scc1 qkv_kv')

    def core(vtiles):
        for nt in range(4):
            p(f'ds_read_b128 {vr(WF + 4 * nt, 4)}, v2 offset:{nt * 1024}')
        for ks in range(KS):
            cur = WF + 16 * (ks % 2)
            nxt = WF + 16 * ((ks + 1) % 2)
            if ks + 1 < KS:
                for nt in range(4):
                    p(f'ds_read_b128 {vr(nxt + 4 * nt, 4)}, v2 offset:{((ks + 1) * 4 + nt) * 1024}')
            x = XB + 4 * ks
            for nt in range(4):
                c = '0' if ks == 0 else vr(ACC + 4 * nt, 4)
                a, b = vr(cur + 4 * nt, 4), vr(x, 4)
                if nt in vtiles:
                    a, b = b, a
                p(f'v_mfma_f32_16x16x32_bf16 {vr(ACC + 4 * nt, 4)}, {a}, {b}, {c}')
                p(f'v_dot2c_f32_bf16 v{S1a if nt % 2 == 0 else S1b}, s19, v{x + nt}')
                p(f'v_dot2c_f32_bf16 v{S2a if nt % 2 == 0 else S2b}, v{x + nt}, v{x + nt}')
        p(f'v_add_f32 v{S1a}, v{S1a}, v{S1b}')
        p(f'v_add_f32 v{S2a}, v{S2a}, v{S2b}')
        stats_finish(p, S1a, S2a, T, MU, RS)

    core(())
    p(f'v_mul_f32 v{RS}, {f32(QSCALE)}, v{RS}')
    p('s_lshr_b32 s15, s14, 1')
    p('s_lshl_b32 s15, s15, 15')
    p('s_add_u32 s15, s15, s21')
    p('s_and_b32 s16, s14, 1')
    p('s_lshl_b32 s16, s16, 8')
    p('s_add_u32 s15, s15, s16')
    p('s_lshl_b32 s16, s13, 4')
    p('v_add_u32 v5, s16, v4')
    p('v_lshlrev_b32 v3, 4, v3')
    for nt in range(4):
        a = ACC + 4 * nt
        for r in range(4):
            p(f'v_fma_f32 v{a + r}, -v{MU}, v{CS + 4 * nt + r}, v{a + r}')
        for r in range(4):
            p(f'v_mul_f32 v{a + r}, v{a + r}, v{RS}')
        p(f'v_cvt_pk_bf16_f32 v{a}, v{a}, v{a + 1}')
        p(f'v_cvt_pk_bf16_f32 v{a + 1}, v{a + 2}, v{a + 3}')
        p(f'v_add_u32 v6, {4 * nt}, v5')
        p('v_mul_u32_u24 v7, 147, v6')
        p('v_lshrrev_b32 v7, 10, v7')
        p('v_mul_u32_u24 v8, 7, v7')
        p('v_sub_u32 v6, v6, v8')
        p('v_lshl_add_u32 v7, v7, 11, v3')
        p('v_lshrrev_b32 v8, 1, v6')
        p('v_lshl_add_u32 v7, v8, 9, v7')
        p('v_and_b32 v6, 1, v6')
        p('v_lshl_add_u32 v7, v6, 3, v7')
        p(f'buffer_store_dwordx2 {vr(a, 2)}, v7, s[4:7], s15 offen')
    p('s_endpgm')
    p.label('qkv_kv')
    core((2, 3))
    p('s_lshl_b32 s16, s8, 7')
    p(f's_add_u32 s16, s16, {KS * 4096}')
    p('v_lshl_add_u32 v5, v3, 2, s16')
    p(f'ds_write_b32 v5, v{MU}')
    p(f'ds_write_b32 v5, v{RS} offset:64')
    p('v_lshl_add_u32 v5, v4, 4, s16')
    p('s_waitcnt lgkmcnt(0)')
    p(f'ds_read_b128 {vr(WF, 4)}, v5')
    p(f'ds_read_b128 {vr(WF + 4, 4)}, v5 offset:64')
    p('s_lshr_b32 s15, s14, 1')
    p('s_lshl_b32 s15, s15, 12')
    p('s_add_u32 s15, s15, s22')
    p('s_and_b32 s16, s14, 1')
    p('s_lshl_b32 s17, s16, 8')
    p('v_lshl_add_u32 v6, v3, 4, s17')
    p('v_lshrrev_b32 v7, 1, v4')
    p('v_lshl_add_u32 v6, v7, 9, v6')
    p('v_and_b32 v7, 1, v4')
    p('v_lshl_add_u32 v6, v7, 3, v6')
    p('v_cmp_eq_u32 vcc, 3, v4')
    p('v_cndmask_b32 v8, 0, 1.0, vcc')
    for nt in range(2):
        a = ACC + 4 * nt
        for r in range(4):
            p(f'v_fma_f32 v{a + r}, -v{MU}, v{CS + 4 * nt + r}, v{a + r}')
        for r in range(4):
            if nt == 1 and r < 3:
                p(f'v_fma_f32 v{a + r}, v{a + r}, v{RS}, v8')
            else:
                p(f'v_mul_f32 v{a + r}, v{a + r}, v{RS}')
        p(f'v_cvt_pk_bf16_f32 v{a}, v{a}, v{a + 1}')
        p(f'v_cvt_pk_bf16_f32 v{a + 1}, v{a + 2}, v{a + 3}')
        p(f'buffer_store_dwordx2 {vr(a, 2)}, v6, s[4:7], s15 offen offset:{1024 * nt}')
    p('s_lshl_b32 s17, s16, 10')
    p('v_lshl_add_u32 v6, v3, 4, s17')
    p('v_and_b32 v7, 1, v4')
    p('v_lshl_add_u32 v6, v7, 9, v6')
    p('v_lshrrev_b32 v7, 1, v4')
    p('v_lshl_add_u32 v6, v7, 3, v6')
    p('v_cmp_eq_u32 vcc, 12, v3')
    p('v_cndmask_b32 v8, 0, 1.0, vcc')
    for nt in (2, 3):
        a = ACC + 4 * nt
        for r in range(4):
            p(f'v_fma_f32 v{a + r}, -v{WF + r}, v{136 + nt - 2}, v{a + r}')
        for r in range(4):
            if nt == 3:
                p(f'v_fma_f32 v{a + r}, v{a + r}, v{WF + 4 + r}, v8')
            else:
                p(f'v_mul_f32 v{a + r}, v{a + r}, v{WF + 4 + r}')
        p(f'v_cvt_pk_bf16_f32 v{a}, v{a}, v{a + 1}')
        p(f'v_cvt_pk_bf16_f32 v{a + 1}, v{a + 2}, v{a + 3}')
        p(f'buffer_store_dwordx2 {vr(a, 2)}, v6, s[4:7], s15 offen offset:{2048 + 256 * (nt - 2)}')
    p.label('qkv_end')
    p('s_endpgm')
    for k in ('qkv1_kernel', 'qkv2_kernel'):
        kernels.append((k, 140, 140, 32))
    return KS * 4096 + 512


def gen_attn(p):
    entry(p, 'attn2_kernel')
    p(f's_mov_b32 s20, {LAY[1]["QF"]}')
    p(f's_mov_b32 s21, {LAY[1]["KV"]}')
    p(f's_mov_b32 s22, {LAY[1]["OF"]}')
    p('s_branch attn_body')
    entry(p, 'attn1_kernel')
    p(f's_mov_b32 s20, {LAY[0]["QF"]}')
    p(f's_mov_b32 s21, {LAY[0]["KV"]}')
    p(f's_mov_b32 s22, {LAY[0]["OF"]}')
    p.label('attn_body')
    p('s_cmp_ge_u32 s2, 256')
    p('s_cbranch_scc1 attn_end')
    ws_srd(p)
    p('v_lshrrev_b32 v1, 6, v0')
    p('v_readfirstlane_b32 s8, v1')
    p('v_and_b32 v1, 63, v0')
    p('v_lshlrev_b32 v2, 4, v1')
    Q = 8
    O = 40
    SB = 104
    PB = 136
    K0 = 152
    RING = 4
    KVR = 160
    T = 224
    p('s_and_b32 s12, s2, 7')
    p('s_lshl_b32 s12, s12, 3')
    p('s_lshr_b32 s13, s2, 3')
    p('s_and_b32 s13, s13, 7')
    p('s_add_u32 s12, s12, s13')
    p('s_lshr_b32 s13, s2, 6')
    p('s_lshl_b32 s14, s12, 15')
    p('s_lshl_b32 s15, s13, 13')
    p('s_add_u32 s14, s14, s15')
    p('s_add_u32 s14, s14, s20')
    srd(p, 4, 10, WS_END)
    for s in range(4):
        p(f's_add_u32 s15, s8, {s}')
        p('s_and_b32 s15, s15, 3')
        p('s_lshl_b32 s15, s15, 11')
        p('s_add_u32 s15, s15, s14')
        p(f'buffer_load_dwordx4 {vr(Q + 8 * s, 4)}, v2, s[4:7], s15 offen')
        p(f'buffer_load_dwordx4 {vr(Q + 8 * s + 4, 4)}, v2, s[4:7], s15 offen offset:1024')
    p(f'buffer_load_dwordx4 {vr(K0, 4)}, v2, s[4:7], s21 offen')
    p(f'buffer_load_dwordx4 {vr(K0 + 4, 4)}, v2, s[4:7], s21 offen offset:1024')
    p('s_lshl_b32 s16, s8, 16')
    p('s_add_u32 s16, s16, s21')

    srd(p, 28, 10, 0)
    p('s_add_u32 s30, s16, 65536')

    def kvload(slot, d='s[28:31]'):
        for j in range(4):
            p(f'buffer_load_dwordx4 {vr(KVR + 16 * slot + 4 * j, 4)}, v2, {d}, s16 offen offset:{1024 * j}')
        p('s_add_u32 s16, s16, 4096')

    for t in range(RING - 1):
        kvload(t)
    for r in range(8):
        p(f'v_mov_b32 v{KVR + 16 * (RING - 1) + 8 + r}, 0')
    for r in range(64):
        p(f'v_mov_b32 v{O + r}, 0')
    p('s_mov_b32 s18, 0xffff0000')
    p('s_mov_b32 s19, 0x07060302')
    p('s_mov_b32 s24, 0')
    p('s_mov_b32 s25, -1')
    p('s_mov_b64 exec, s[24:25]')
    for s in range(4):
        p(f'v_mov_b32 v{Q + 8 * s + 6}, 0')
        p(f'v_mov_b32 v{Q + 8 * s + 7}, 0')
    p('s_mov_b64 exec, -1')

    def set_neg_max(qb, m, t1, t2):
        p(f'v_sub_f32 v{m}, 0, v{m}')
        p(f'v_and_b32 v{t1}, s18, v{m}')
        p(f'v_sub_f32 v{m}, v{m}, v{t1}')
        p(f'v_and_b32 v{t2}, s18, v{m}')
        p(f'v_sub_f32 v{m}, v{m}, v{t2}')
        p('s_mov_b64 exec, s[24:25]')
        p(f'v_perm_b32 v{qb + 6}, v{t2}, v{t1}, s19')
        p(f'v_lshrrev_b32 v{qb + 7}, 16, v{m}')
        p('s_mov_b64 exec, -1')

    def tile_max(sreg, m, t):
        p(f'v_max3_f32 v{m}, v{sreg}, v{sreg + 1}, v{sreg + 2}')
        p(f'v_max3_f32 v{t}, v{sreg + 3}, v{sreg + 4}, v{sreg + 5}')
        p(f'v_max3_f32 v{m}, v{m}, v{sreg + 6}, v{sreg + 7}')
        p(f'v_max3_f32 v{t}, v{t}, v{sreg + 8}, v{sreg + 9}')
        p(f'v_max3_f32 v{m}, v{m}, v{sreg + 10}, v{sreg + 11}')
        p(f'v_max3_f32 v{t}, v{t}, v{sreg + 12}, v{sreg + 13}')
        p(f'v_max3_f32 v{m}, v{m}, v{sreg + 14}, v{sreg + 15}')
        p(f'v_max_f32 v{m}, v{m}, v{t}')

    def half_max(m, t):
        p(f'v_mov_b32 v{t}, v{m}')
        p(f'v_permlane32_swap_b32 v{m}, v{t}')
        p(f'v_max_f32 v{m}, v{m}, v{t}')

    SM = [SB, SB + 16]
    for half in range(2):
        for j in range(2):
            s = 2 * half + j
            p(f'v_mfma_f32_32x32x16_bf16 {vr(SM[j], 16)}, {vr(K0, 4)}, {vr(Q + 8 * s, 4)}, 0')
            p(f'v_mfma_f32_32x32x16_bf16 {vr(SM[j], 16)}, {vr(K0 + 4, 4)}, {vr(Q + 8 * s + 4, 4)}, {vr(SM[j], 16)}')
        for j in range(2):
            tile_max(SM[j], T + 4 * j, T + 4 * j + 1)
        for j in range(2):
            half_max(T + 4 * j, T + 4 * j + 1)
        for j in range(2):
            s = 2 * half + j
            set_neg_max(Q + 8 * s, T + 4 * j, T + 4 * j + 1, T + 4 * j + 2)

    def s_mfma(u, i):
        kt, s = (u // 4) % RING, u % 4
        d = vr(SB + 16 * (u % 2), 16)
        c = '0' if i == 0 else d
        return f'v_mfma_f32_32x32x16_bf16 {d}, {vr(KVR + 16 * kt + 4 * i, 4)}, {vr(Q + 8 * s + 4 * i, 4)}, {c}'

    def pv_mfma(u, i):
        kt, s = (u // 4) % RING, u % 4
        d = vr(O + 16 * s, 16)
        return f'v_mfma_f32_32x32x16_bf16 {d}, {vr(KVR + 16 * kt + 8 + 4 * i, 4)}, {vr(PB + 8 * (u % 2) + 4 * i, 4)}, {d}'

    def slot(u, do_s=True, do_pv=True):
        sb = SB + 16 * (u % 2)
        pb = PB + 8 * (u % 2)
        m = [s_mfma(u + 1, 0) if do_s else None, s_mfma(u + 1, 1) if do_s else None,
             pv_mfma(u - 1, 0) if do_pv else None, pv_mfma(u - 1, 1) if do_pv else None]
        for q in range(4):
            if m[q]:
                p(m[q])
            for j in range(4):
                p(f'v_exp_f32 v{sb + 4 * q + j}, v{sb + 4 * q + j}')
            if q > 0:
                p(f'v_cvt_pk_bf16_f32 v{pb + 2 * q - 2}, v{sb + 4 * q - 4}, v{sb + 4 * q - 3}')
                p(f'v_cvt_pk_bf16_f32 v{pb + 2 * q - 1}, v{sb + 4 * q - 2}, v{sb + 4 * q - 1}')
        p(f'v_cvt_pk_bf16_f32 v{pb + 6}, v{sb + 12}, v{sb + 13}')
        p(f'v_cvt_pk_bf16_f32 v{pb + 7}, v{sb + 14}, v{sb + 15}')

    NU = 4 * RING
    for r in range(8):
        p(f'v_mov_b32 v{PB + 8 + r}, 0')
    p(s_mfma(0, 0))
    p(s_mfma(0, 1))
    p('s_mov_b32 s17, 4')
    p('s_nop 9')
    p('.p2align 6')
    p.label('attn_loop')
    for u in range(NU):
        slot(u)
        if u % 4 == 0:
            kvload(((u - 1) // 4) % RING)
    p('s_sub_u32 s17, s17, 1')
    p('s_cmp_lg_u32 s17, 0')
    p('s_cbranch_scc1 attn_loop')
    p(pv_mfma(NU - 1, 0))
    p(pv_mfma(NU - 1, 1))
    for s in range(1, 4):
        p(f's_add_u32 s15, s8, {s}')
        p('s_and_b32 s15, s15, 3')
        p('s_mul_i32 s15, s15, 12288')
        p(f'v_add_u32 v3, s15, v2')
        for j in range(4):
            p(f'ds_write_b128 v3, {vr(O + 16 * s + 4 * j, 4)} offset:{(s - 1) * 4096 + j * 1024}')
    p('s_mul_i32 s15, s8, 12288')
    p('v_add_u32 v3, s15, v2')
    p('s_waitcnt lgkmcnt(0)')
    p('s_barrier')
    for s in range(1, 4):
        for j in range(4):
            p(f'ds_read_b128 {vr(O + 16 * s + 4 * j, 4)}, v3 offset:{(s - 1) * 4096 + j * 1024}')
    for s in range(1, 4):
        for r in range(16):
            p(f'v_add_f32 v{O + r}, v{O + r}, v{O + 16 * s + r}')
    p(f'v_add_f32 v{T}, |v{O}|, |v{O + 1}|')
    for r in range(2, 16):
        p(f'v_add_f32 v{T}, v{T}, |v{O + r}|')
    p(f'v_mov_b32 v{T + 1}, 0x7f800000')
    p(f'v_cmp_lt_f32 vcc, v{T}, v{T + 1}')
    p('s_cmp_eq_u64 vcc, -1')
    p('s_cbranch_scc0 attn_slow')
    p.label('attn_fin')
    p(f'v_mov_b32 v{T}, v{O + 12}')
    p(f'v_mov_b32 v{T + 1}, v{O + 12}')
    p(f'v_permlane32_swap_b32 v{T}, v{T + 1}')
    p(f'v_rcp_f32 v{T}, v{T + 1}')
    for r in range(16):
        p(f'v_mul_f32 v{O + r}, v{O + r}, v{T}')
    for rq in range(4):
        p(f'v_cvt_pk_bf16_f32 v{O + 16 + 2 * rq}, v{O + 4 * rq}, v{O + 4 * rq + 1}')
        p(f'v_cvt_pk_bf16_f32 v{O + 17 + 2 * rq}, v{O + 4 * rq + 2}, v{O + 4 * rq + 3}')
    p('s_lshl_b32 s15, s13, 2')
    p('s_add_u32 s15, s15, s8')
    p('s_mul_i32 s15, s15, 7')
    p('v_lshrrev_b32 v3, 5, v1')
    p('v_add_u32 v3, s15, v3')
    p('v_bfe_u32 v4, v1, 4, 1')
    p('v_mul_u32_u24 v4, 14336, v4')
    p('v_and_b32 v5, 15, v1')
    p('v_lshl_add_u32 v4, v5, 4, v4')
    p('s_mul_i32 s15, s12, 28672')
    p('s_add_u32 s15, s15, s22')
    for rq in range(4):
        p(f'v_add_u32 v5, {2 * rq}, v3')
        p('v_lshrrev_b32 v6, 3, v5')
        p('v_lshl_add_u32 v6, v6, 10, v4')
        p('v_and_b32 v7, 3, v5')
        p('v_lshl_add_u32 v6, v7, 8, v6')
        p('v_bfe_u32 v7, v5, 2, 1')
        p('v_lshl_add_u32 v6, v7, 3, v6')
        if rq == 3:
            p('s_mov_b32 exec_hi, 0')
        p(f'buffer_store_dwordx2 {vr(O + 16 + 2 * rq, 2)}, v6, s[4:7], s15 offen')
    p.label('attn_end')
    p('s_endpgm')
    p.label('attn_slow')
    p('s_mov_b64 exec, s[24:25]')
    p(f'v_mov_b32 v{Q + 6}, 0')
    p(f'v_mov_b32 v{Q + 7}, 0')
    p('s_mov_b64 exec, -1')
    p(f'v_mov_b32 v{T + 8}, 0xff800000')
    p('s_mov_b32 s16, s21')
    p('s_mov_b32 s17, 64')
    p.label('attn_slow1')
    p(f'buffer_load_dwordx4 {vr(KVR, 4)}, v2, s[4:7], s16 offen')
    p(f'buffer_load_dwordx4 {vr(KVR + 4, 4)}, v2, s[4:7], s16 offen offset:1024')
    p('s_add_u32 s16, s16, 4096')
    p(f'v_mfma_f32_32x32x16_bf16 {vr(SB, 16)}, {vr(KVR, 4)}, {vr(Q, 4)}, 0')
    p(f'v_mfma_f32_32x32x16_bf16 {vr(SB, 16)}, {vr(KVR + 4, 4)}, {vr(Q + 4, 4)}, {vr(SB, 16)}')
    tile_max(SB, T, T + 1)
    p(f'v_max_f32 v{T + 8}, v{T + 8}, v{T}')
    p('s_sub_u32 s17, s17, 1')
    p('s_cmp_lg_u32 s17, 0')
    p('s_cbranch_scc1 attn_slow1')
    half_max(T + 8, T + 1)
    set_neg_max(Q, T + 8, T + 1, T + 2)
    for r in range(16):
        p(f'v_mov_b32 v{O + r}, 0')
    p('s_mov_b32 s16, s21')
    p('s_mov_b32 s17, 64')
    p.label('attn_slow2')
    kvload(0, 's[4:7]')
    p(f'v_mfma_f32_32x32x16_bf16 {vr(SB, 16)}, {vr(KVR, 4)}, {vr(Q, 4)}, 0')
    p(f'v_mfma_f32_32x32x16_bf16 {vr(SB, 16)}, {vr(KVR + 4, 4)}, {vr(Q + 4, 4)}, {vr(SB, 16)}')
    for r in range(16):
        p(f'v_exp_f32 v{SB + r}, v{SB + r}')
    for r in range(8):
        p(f'v_cvt_pk_bf16_f32 v{PB + r}, v{SB + 2 * r}, v{SB + 2 * r + 1}')
    p(f'v_mfma_f32_32x32x16_bf16 {vr(O, 16)}, {vr(KVR + 8, 4)}, {vr(PB, 4)}, {vr(O, 16)}')
    p(f'v_mfma_f32_32x32x16_bf16 {vr(O, 16)}, {vr(KVR + 12, 4)}, {vr(PB + 4, 4)}, {vr(O, 16)}')
    p('s_sub_u32 s17, s17, 1')
    p('s_cmp_lg_u32 s17, 0')
    p('s_cbranch_scc1 attn_slow2')
    p('s_branch attn_fin')
    for k in ('attn1_kernel', 'attn2_kernel'):
        kernels.append((k, 240, 240, 32))
    return 4 * 12288


def gen_wo(p):
    entry(p, 'wo2_kernel')
    p(f's_mov_b32 s20, {LAY[1]["OF"]}')
    p(f's_mov_b32 s21, {WS_X2F}')
    p(f's_mov_b32 s22, {LAY[1]["X1F"]}')
    p('s_branch wo_body')
    entry(p, 'wo1_kernel')
    p(f's_mov_b32 s20, {LAY[0]["OF"]}')
    p(f's_mov_b32 s21, {WS_XF0}')
    p(f's_mov_b32 s22, {LAY[0]["X1F"]}')
    p.label('wo_body')
    p('s_cmp_ge_u32 s2, 224')
    p('s_cbranch_scc1 wo_end')
    ws_srd(p)
    lane_setup(p)
    rb_cg_64(p)
    XB, ACC, WF, RES = 16, 72, 88, 120
    p('s_lshl_b32 s14, s12, 2')
    p('s_add_u32 s14, s14, s8')
    p('s_mul_i32 s14, s14, 14336')
    p('s_add_u32 s15, s14, s20')
    p(f's_mul_i32 s16, s13, {KS * 4096}')
    p(f's_add_u32 s16, s16, {WS_WO}')
    p('s_lshl_b32 s17, s8, 10')
    p('v_add_u32 v5, s17, v2')
    p('s_mov_b32 m0, s17')
    srd(p, 4, 10, WS_END)
    for ks in range(KS):
        p('buffer_load_dwordx4 v5, s[4:7], s16 offen lds')
        p('s_add_u32 m0, m0, 4096')
        p('s_add_u32 s16, s16, 4096')
        if ks and ks % 4 == 0:
            p('s_add_u32 s15, s15, 4096')
        p(f'buffer_load_dwordx4 {vr(XB + 4 * ks, 4)}, v2, s[4:7], s15 offen offset:{1024 * (ks % 4)}')
    p('s_lshl_b32 s18, s13, 11')
    p('s_add_u32 s14, s14, s18')
    p('s_add_u32 s18, s14, s21')
    p(f'buffer_load_dwordx4 {vr(RES, 4)}, v2, s[4:7], s18 offen')
    p(f'buffer_load_dwordx4 {vr(RES + 4, 4)}, v2, s[4:7], s18 offen offset:1024')
    p('s_waitcnt vmcnt(2)')
    p('s_barrier')
    for nt in range(4):
        p(f'ds_read_b128 {vr(WF + 4 * nt, 4)}, v2 offset:{nt * 1024}')
    for ks in range(KS):
        cur = WF + 16 * (ks % 2)
        nxt = WF + 16 * ((ks + 1) % 2)
        if ks + 1 < KS:
            for nt in range(4):
                p(f'ds_read_b128 {vr(nxt + 4 * nt, 4)}, v2 offset:{((ks + 1) * 4 + nt) * 1024}')
        for nt in range(4):
            c = '0' if ks == 0 else vr(ACC + 4 * nt, 4)
            p(f'v_mfma_f32_16x16x32_bf16 {vr(ACC + 4 * nt, 4)}, {vr(cur + 4 * nt, 4)}, {vr(XB + 4 * ks, 4)}, {c}')
    p('s_add_u32 s18, s14, s22')
    p('s_mov_b32 s19, 0xffff0000')
    for j in range(8):
        p(f'v_lshlrev_b32 v{XB + 2 * j}, 16, v{RES + j}')
        p(f'v_and_b32 v{XB + 2 * j + 1}, s19, v{RES + j}')
    for r in range(16):
        p(f'v_add_f32 v{ACC + r}, v{ACC + r}, v{XB + r}')
    for j in range(8):
        p(f'v_cvt_pk_bf16_f32 v{RES + j}, v{ACC + 2 * j}, v{ACC + 2 * j + 1}')
    p(f'buffer_store_dwordx4 {vr(RES, 4)}, v2, s[4:7], s18 offen')
    p(f'buffer_store_dwordx4 {vr(RES + 4, 4)}, v2, s[4:7], s18 offen offset:1024')
    p.label('wo_end')
    p('s_endpgm')
    for k in ('wo1_kernel', 'wo2_kernel'):
        kernels.append((k, 128, 128, 32))
    return KS * 4096


def gen_f1(p):
    entry(p, 'fa2_kernel')
    p(f's_mov_b32 s20, {LAY[1]["X1F"]}')
    p(f's_mov_b32 s21, {LAY[1]["HF"]}')
    p('s_branch fa_body')
    entry(p, 'fa1_kernel')
    p(f's_mov_b32 s20, {LAY[0]["X1F"]}')
    p(f's_mov_b32 s21, {LAY[0]["HF"]}')
    p.label('fa_body')
    p('s_cmp_ge_u32 s2, 256')
    p('s_cbranch_scc1 fa_end')
    ws_srd(p)
    p(f's_load_dwordx2 s[28:29], s[0:1], {K_B1}')
    lane_setup(p)
    p('s_bfe_u32 s12, s2, 0x20001')
    p('s_lshl_b32 s12, s12, 2')
    p('s_bfe_u32 s13, s2, 0x20003')
    p('s_add_u32 s12, s12, s13')
    p('s_and_b32 s13, s2, 1')
    p('s_lshl_b32 s13, s13, 3')
    p('s_lshr_b32 s14, s2, 5')
    p('s_add_u32 s13, s13, s14')
    XB = 24
    ACC = 136
    CS = 192
    B1 = 220
    ST = 8
    NB = 3
    p('s_lshl_b32 s14, s12, 3')
    p('s_lshl_b32 s15, s8, 1')
    p('s_add_u32 s14, s14, s15')
    p('s_mul_i32 s15, s14, 14336')
    p('s_add_u32 s15, s15, s20')
    p('s_add_u32 s18, s15, 14336')
    p(f's_mul_i32 s16, s13, {KS * 7168}')
    p(f's_add_u32 s16, s16, {WS_W1}')
    p('s_lshl_b32 s17, s8, 10')
    p('v_add_u32 v5, s17, v2')
    p('s_mov_b32 m0, s17')
    srd(p, 4, 10, WS_END)
    srd(p, 24, 28, F * 2)
    CH = [4, 4, 6]
    bounds = []
    acc_k = 0
    for c in CH:
        acc_k += c
        bounds.append(acc_k)
    ndma = 0
    ks_x = 0
    issued = []
    nops = 0
    for ci, kend in enumerate(bounds):
        iend = min(25, -(-(kend * 7) // 4))
        while ndma < iend or ks_x < kend:
            if ndma < iend:
                p('buffer_load_dwordx4 v5, s[4:7], s16 offen lds')
                p('s_add_u32 m0, m0, 4096')
                p('s_add_u32 s16, s16, 4096')
                ndma += 1
                nops += 1
            if ndma < iend:
                p('buffer_load_dwordx4 v5, s[4:7], s16 offen lds')
                p('s_add_u32 m0, m0, 4096')
                p('s_add_u32 s16, s16, 4096')
                ndma += 1
                nops += 1
            if ks_x < kend:
                ks = ks_x
                if ks and ks % 4 == 0:
                    p('s_add_u32 s15, s15, 4096')
                    p('s_add_u32 s18, s18, 4096')
                p(f'buffer_load_dwordx4 {vr(XB + 4 * ks, 4)}, v2, s[4:7], s15 offen offset:{1024 * (ks % 4)}')
                p(f'buffer_load_dwordx4 {vr(XB + 56 + 4 * ks, 4)}, v2, s[4:7], s18 offen offset:{1024 * (ks % 4)}')
                ks_x += 1
                nops += 2
        issued.append(nops)
    assert nops <= 63
    for r in range(8):
        p(f'v_mov_b32 v{ST + r}, 0')
    p('s_mov_b32 s19, 0x3f803f80')
    total = nops

    def rd(ks):
        b = 28 * (ks % NB)
        for nt in range(7):
            off = (ks * 7 + nt) * 1024
            va = 'v2' if off < 65536 else 'v6'
            p(f'ds_read_b128 {ar(b + 4 * nt, 4)}, {va} offset:{off if off < 65536 else off - 65536}')

    p('v_add_u32 v6, 0x10000, v2')
    ks = 0
    extra = 0
    for ci, kend in enumerate(bounds):
        p(f's_waitcnt vmcnt({total + extra - issued[ci]})')
        p('s_barrier')
        if ci == 0:
            p('s_mul_i32 s22, s13, 448')
            p(f's_add_u32 s22, s22, {WS_C1}')
            p('s_mul_i32 s23, s13, 224')
            p('v_lshlrev_b32 v7, 4, v4')
            p('v_lshlrev_b32 v20, 3, v4')
        rd(ks)
        first = ks
        while ks < kend:
            if ks + 1 < kend:
                rd(ks + 1)
            b = 28 * (ks % NB)
            for nt in range(7):
                for m in range(2):
                    d = vr(ACC + 28 * m + 4 * nt, 4)
                    c = '0' if ks == 0 else d
                    p(f'v_mfma_f32_16x16x32_bf16 {d}, {ar(b + 4 * nt, 4)}, {vr(XB + 56 * m + 4 * ks, 4)}, {c}')
                    j = nt * 2 + m
                    if j < 8:
                        mm, r = j // 4, j % 4
                        x = XB + 56 * mm + 4 * ks + r
                        p(f'v_dot2c_f32_bf16 v{ST + 4 * mm + (r % 2)}, s19, v{x}')
                        p(f'v_dot2c_f32_bf16 v{ST + 4 * mm + 2 + (r % 2)}, v{x}, v{x}')
            if ci == len(bounds) - 1 and ks == first:
                for nt in range(7):
                    p(f'buffer_load_dwordx4 {vr(CS + 4 * nt, 4)}, v7, s[4:7], s22 offen offset:{64 * nt}')
                    p(f'buffer_load_dwordx2 {vr(B1 + 2 * nt, 2)}, v20, s[24:27], s23 offen offset:{32 * nt}')
            ks += 1
    for m in range(2):
        p(f'v_add_f32 v{ST + 4 * m}, v{ST + 4 * m}, v{ST + 4 * m + 1}')
        p(f'v_add_f32 v{ST + 4 * m + 2}, v{ST + 4 * m + 2}, v{ST + 4 * m + 3}')
        stats_finish(p, ST + 4 * m, ST + 4 * m + 2, 20, 16 + 2 * m, 17 + 2 * m)
    p('s_lshr_b32 s15, s13, 1')
    p('s_mul_i32 s15, s15, 7168')
    p(f's_mul_i32 s16, s14, {KB * 1024}')
    p('s_add_u32 s15, s15, s16')
    p('s_add_u32 s15, s15, s21')
    p('s_and_b32 s16, s13, 1')
    p('s_mul_i32 s17, s16, 3072')
    p('s_add_u32 s17, s17, s15')
    p('s_lshl_b32 s16, s16, 3')
    p('s_add_u32 s16, s16, s15')
    p('s_add_u32 s16, s16, 6144')
    p('s_mov_b32 s19, 0xffff0000')
    C0 = -2.0 * math.sqrt(2.0 / math.pi) * math.log2(math.e)
    p(f's_mov_b32 s22, {f32(C0 * 0.044715)}')
    p(f'v_mov_b32 v20, {f32(C0)}')
    BF = XB
    for j in range(14):
        p(f'v_lshlrev_b32 v{BF + 2 * j}, 16, v{B1 + j}')
        p(f'v_and_b32 v{BF + 2 * j + 1}, s19, v{B1 + j}')
    TM = XB + 32
    for m in range(2):
        mu, rs = 16 + 2 * m, 17 + 2 * m
        for nt in range(7):
            a = ACC + 28 * m + 4 * nt
            t = TM + 8 * (nt % 2)
            for r in range(4):
                p(f'v_fma_f32 v{a + r}, -v{mu}, v{CS + 4 * nt + r}, v{a + r}')
            for r in range(4):
                p(f'v_fma_f32 v{a + r}, v{a + r}, v{rs}, v{BF + 4 * nt + r}')
            for r in range(4):
                p(f'v_mul_f32 v{t + r}, v{a + r}, v{a + r}')
            for r in range(4):
                p(f'v_fma_f32 v{t + r}, v{t + r}, s22, v20')
            for r in range(4):
                p(f'v_mul_f32 v{t + r}, v{t + r}, v{a + r}')
            for r in range(4):
                p(f'v_exp_f32 v{t + r}, v{t + r}')
            for r in range(4):
                p(f'v_add_f32 v{t + r}, 1.0, v{t + r}')
            for r in range(4):
                p(f'v_rcp_f32 v{t + r}, v{t + r}')
            for r in range(4):
                p(f'v_mul_f32 v{a + r}, v{a + r}, v{t + r}')
            o = ACC + 28 * m + 8 * (nt // 2) + 2 * (nt % 2)
            p(f'v_cvt_pk_bf16_f32 v{o}, v{a}, v{a + 1}')
            p(f'v_cvt_pk_bf16_f32 v{o + 1}, v{a + 2}, v{a + 3}')
            if nt % 2 == 1:
                p(f'buffer_store_dwordx4 {vr(o - 2, 4)}, v2, s[4:7], s17 offen offset:{1024 * (nt // 2)}')
            if nt == 6:
                p(f'buffer_store_dwordx2 {vr(o, 2)}, v2, s[4:7], s16 offen')
        if m == 0:
            p(f's_add_u32 s17, s17, {KB * 1024}')
            p(f's_add_u32 s16, s16, {KB * 1024}')
    p.label('fa_end')
    p('s_endpgm')
    for k in ('fa1_kernel', 'fa2_kernel'):
        kernels.append((k, 236 + 28 * NB, 236, 32))
    return 100 * 1024


def gen_f2(p):
    entry(p, 'fb2_kernel')
    p(f's_mov_b32 s20, {LAY[1]["HF"]}')
    p(f's_mov_b32 s21, {LAY[1]["X1F"]}')
    p('s_mov_b32 s23, 1')
    p('s_branch fb_body')
    entry(p, 'fb1_kernel')
    p(f's_mov_b32 s20, {LAY[0]["HF"]}')
    p(f's_mov_b32 s21, {LAY[0]["X1F"]}')
    p('s_mov_b32 s23, 0')
    p.label('fb_body')
    p('s_cmp_ge_u32 s2, 224')
    p('s_cbranch_scc1 fb_end')
    ws_srd(p)
    p(f's_load_dwordx4 s[28:31], s[0:1], {K_B2}')
    lane_setup(p)
    rb_cg_64(p)
    ACC = 16
    RES = 80
    RING = 7
    p(f's_mul_i32 s14, s13, {KB * 4096}')
    p(f's_mul_i32 s15, s8, {14 * 4096}')
    p('s_add_u32 s14, s14, s15')
    p(f's_add_u32 s14, s14, {WS_W2}')
    p('s_mul_i32 s15, s8, 14336')
    p(f's_mul_i32 s16, s12, {4 * KB * 1024}')
    p('s_add_u32 s15, s15, s16')
    p('s_add_u32 s15, s15, s20')
    for s in range(4):
        p(f's_add_u32 s16, s8, {s}')
        p('s_and_b32 s16, s16, 3')
        p(f's_mul_i32 s16, s16, {KB * 1024}')
        p(f'v_add_u32 v{8 + s}, s16, v2')
    srd(p, 4, 10, WS_END)
    srd(p, 24, 28, D * 2)
    srd(p, 32, 30, S * D * 2)

    def load(i):
        b = 32 * (i % RING)
        for nt in range(4):
            p(f'buffer_load_dwordx4 {ar(b + 4 * nt, 4)}, v2, s[4:7], s14 offen offset:{1024 * nt}')
        p('s_add_u32 s14, s14, 4096')
        if i and i % 4 == 0:
            p('s_add_u32 s15, s15, 4096')
        for s in range(4):
            p(f'buffer_load_dwordx4 {ar(b + 16 + 4 * s, 4)}, v{8 + s}, s[4:7], s15 offen offset:{1024 * (i % 4)}')

    for i in range(RING):
        load(i)
    p('s_lshl_b32 s16, s12, 2')
    p('s_add_u32 s16, s16, s8')
    p('s_mul_i32 s17, s16, 14336')
    p('s_lshl_b32 s18, s13, 11')
    p('s_add_u32 s17, s17, s18')
    p('s_add_u32 s18, s17, s21')
    p('s_lshl_b32 s19, s13, 7')
    p('v_lshlrev_b32 v5, 3, v4')
    for i in range(14):
        b = 32 * (i % RING)
        for s in range(4):
            for nt in range(4):
                d = vr(ACC + 16 * s + 4 * nt, 4)
                c = '0' if i == 0 else d
                p(f'v_mfma_f32_16x16x32_bf16 {d}, {ar(b + 4 * nt, 4)}, {ar(b + 16 + 4 * s, 4)}, {c}')
        if i + RING < 14:
            load(i + RING)
        if i == 14 - RING:
            p(f'buffer_load_dwordx4 {vr(RES, 4)}, v2, s[4:7], s18 offen')
            p(f'buffer_load_dwordx4 {vr(RES + 4, 4)}, v2, s[4:7], s18 offen offset:1024')
            for nt in range(4):
                p(f'buffer_load_dwordx2 {vr(RES + 8 + 2 * nt, 2)}, v5, s[24:27], s19 offen offset:{32 * nt}')
    for s in range(1, 4):
        p(f's_add_u32 s15, s8, {s}')
        p('s_and_b32 s15, s15, 3')
        p('s_mul_i32 s15, s15, 12288')
        p('v_add_u32 v6, s15, v2')
        for j in range(4):
            p(f'ds_write_b128 v6, {vr(ACC + 16 * s + 4 * j, 4)} offset:{(s - 1) * 4096 + j * 1024}')
    p('s_mul_i32 s15, s8, 12288')
    p('v_add_u32 v6, s15, v2')
    p('s_waitcnt lgkmcnt(0)')
    p('s_barrier')
    for s in range(1, 4):
        for j in range(4):
            p(f'ds_read_b128 {vr(ACC + 16 * s + 4 * j, 4)}, v6 offset:{(s - 1) * 4096 + j * 1024}')
    p('s_mov_b32 s19, 0xffff0000')
    U = 96
    for j in range(16):
        p(f'v_lshlrev_b32 v{U + 2 * j}, 16, v{RES + j}')
        p(f'v_and_b32 v{U + 2 * j + 1}, s19, v{RES + j}')
    for r in range(16):
        p(f'v_add_f32 v{U + r}, v{U + r}, v{U + 16 + r}')
    for r in range(16):
        p(f'v_add_f32 v{ACC + r}, v{ACC + r}, v{U + r}')
    for s in range(1, 4):
        for r in range(16):
            p(f'v_add_f32 v{ACC + r}, v{ACC + r}, v{ACC + 16 * s + r}')
    for j in range(8):
        p(f'v_cvt_pk_bf16_f32 v{RES + j}, v{ACC + 2 * j}, v{ACC + 2 * j + 1}')
    p('s_cmp_eq_u32 s23, 1')
    p('s_cbranch_scc1 fb_out')
    p(f's_add_u32 s18, s17, {WS_X2F}')
    p(f'buffer_store_dwordx4 {vr(RES, 4)}, v2, s[4:7], s18 offen')
    p(f'buffer_store_dwordx4 {vr(RES + 4, 4)}, v2, s[4:7], s18 offen offset:1024')
    p('s_endpgm')
    p.label('fb_out')
    p('s_mul_i32 s17, s16, 14336')
    p('s_lshl_b32 s18, s13, 7')
    p('s_add_u32 s17, s17, s18')
    p('v_mul_u32_u24 v6, 896, v3')
    p('v_add_u32 v6, v6, v5')
    for nt in range(4):
        p(f'buffer_store_dwordx2 {vr(RES + 2 * nt, 2)}, v6, s[32:35], s17 offen offset:{32 * nt}')
    p.label('fb_end')
    p('s_endpgm')
    for k in ('fb1_kernel', 'fb2_kernel'):
        kernels.append((k, 128 + 32 * RING, 128, 40))
    return 4 * 12288


def main():
    p = Prog()
    nprep = gen_prep(p)
    l_qkv = gen_qkv(p)
    l_attn = gen_attn(p)
    l_wo = gen_wo(p)
    l_f1 = gen_f1(p)
    l_f2 = gen_f2(p)
    p.finish()
    launches.append(('prep_kernel', nprep, 256, 0))
    for L in (1, 2):
        launches.append((f'qkv{L}_kernel', 256, 256, l_qkv))
        launches.append((f'attn{L}_kernel', 256, 256, l_attn))
        launches.append((f'wo{L}_kernel', 224, 256, l_wo))
        launches.append((f'fa{L}_kernel', 256, 256, l_f1))
        launches.append((f'fb{L}_kernel', 224, 256, l_f2))
    out = []
    for (k, g, b, l) in launches:
        out.append(f'; @launch kernel={k} grid=({g},1,1) block=({b},1,1) lds={l}')
    out.append('.amdgcn_target "amdgcn-amd-amdhsa--gfx950"')
    out.append('.text')
    out.append(p.text())
    out.append('.section .rodata,"a"')
    for (k, nv, acc, ns) in kernels:
        acc4 = (acc + 3) // 4 * 4
        out.append('.p2align 6')
        out.append(f'.amdhsa_kernel {k}')
        out.append(f'  .amdhsa_next_free_vgpr {nv}')
        out.append(f'  .amdhsa_next_free_sgpr {ns}')
        out.append(f'  .amdhsa_accum_offset {acc4}')
        out.append('  .amdhsa_group_segment_fixed_size 0')
        out.append('  .amdhsa_kernarg_size 104')
        out.append('  .amdhsa_user_sgpr_count 2')
        out.append('  .amdhsa_user_sgpr_kernarg_segment_ptr 1')
        out.append('  .amdhsa_system_sgpr_workgroup_id_x 1')
        out.append('.end_amdhsa_kernel')
    dst = sys.argv[1] if len(sys.argv) > 1 else f'cdna_kernels/{NAME}.s'
    open(dst, 'w').write('\n'.join(out) + '\n')
    import json
    json.dump(dict(XF0=WS_XF0, WQKV=WS_WQKV, CQKV=WS_CQKV, WO=WS_WO, W1=WS_W1, C1=WS_C1, W2=WS_W2, X2F=WS_X2F,
                   LAY=LAY, END=WS_END), open('layout.json', 'w'))
    print('wrote', dst, 'ws bytes', WS_END, 'max regs', p.max_regs())


if __name__ == '__main__':
    main()
```

```python
import sys
def kernel(name, body, iters, nv=256, pre=""):
    s = f"""
.globl {name}
.p2align 8
.type {name},@function
{name}:
    s_load_dwordx2 s[4:5], s[0:1], 0
    s_load_dwordx2 s[6:7], s[0:1], 8
    v_lshrrev_b32 v1, 6, v0
    s_nop 0
    v_readfirstlane_b32 s8, v1
    v_cvt_f32_u32 v2, v0
    v_mul_f32 v2, 0x3a000000, v2
"""
    for r in range(3, nv):
        s += f"    v_mov_b32 v{r}, v2\n"
    s += pre
    s += f"""    s_waitcnt lgkmcnt(0)
    s_barrier
    s_memtime s[10:11]
    s_mov_b32 s9, {iters}
    s_waitcnt lgkmcnt(0)
.p2align 6
{name}_loop:
{body}
    s_sub_u32 s9, s9, 1
    s_cmp_lg_u32 s9, 0
    s_cbranch_scc1 {name}_loop
    s_nop 15
    s_nop 15
    s_memtime s[12:13]
    s_waitcnt lgkmcnt(0)
    s_sub_u32 s12, s12, s10
    s_mul_i32 s14, s2, WAVES
    s_add_u32 s14, s14, s8
    s_lshl_b32 s14, s14, 2
    v_mov_b32 v1, s14
    v_mov_b32 v2, s12
    v_cmp_eq_u32 vcc, 0, v0
    s_mov_b64 exec, 1
    global_store_dword v1, v2, s[6:7]
    s_endpgm
"""
    return s

def desc(name, nv):
    return f""".amdhsa_kernel {name}
  .amdhsa_next_free_vgpr {nv}
  .amdhsa_next_free_sgpr 32
  .amdhsa_accum_offset {nv}
  .amdhsa_group_segment_fixed_size 0
  .amdhsa_kernarg_size 16
  .amdhsa_user_sgpr_count 2
  .amdhsa_user_sgpr_kernarg_segment_ptr 1
  .amdhsa_system_sgpr_workgroup_id_x 1
.end_amdhsa_kernel
"""
def meta(names, nv):
    s = ".amdgpu_metadata\n---\namdhsa.version: [1, 2]\namdhsa.kernels:\n"
    for n in names:
        s += f"""  - .name: {n}
    .symbol: {n}.kd
    .kernarg_segment_size: 16
    .kernarg_segment_align: 8
    .group_segment_fixed_size: 0
    .private_segment_fixed_size: 0
    .wavefront_size: 64
    .sgpr_count: 32
    .vgpr_count: {nv}
    .max_flat_workgroup_size: 1024
    .args:
      - {{.name: A, .size: 8, .offset: 0, .value_kind: global_buffer, .address_space: global}}
      - {{.name: O, .size: 8, .offset: 8, .value_kind: global_buffer, .address_space: global}}
"""
    s += "...\n.end_amdgpu_metadata\n"
    return s

NV=128
bodies = {}
bodies['exp'] = "\n".join(f"    v_exp_f32 v{16+i}, v{64+i}" for i in range(32))
bodies['fma'] = "\n".join(f"    v_fma_f32 v{16+i}, v{64+i}, v4, v5" for i in range(32))
bodies['add'] = "\n".join(f"    v_add_f32 v{16+i}, v{64+i}, v4" for i in range(32))
bodies['cvt'] = "\n".join(f"    v_cvt_pk_bf16_f32 v{16+i}, v{64+i}, v{65+i}" for i in range(32))
bodies['pkfma'] = "\n".join(f"    v_pk_fma_f32 v[{16+2*i}:{17+2*i}], v[{64+2*i}:{65+2*i}], v[4:5], v[6:7]" for i in range(16))*1 + "\n" + "\n".join(f"    v_pk_fma_f32 v[{16+2*i}:{17+2*i}], v[{64+2*i}:{65+2*i}], v[4:5], v[6:7]" for i in range(16))
bodies['max3'] = "\n".join(f"    v_max3_f32 v{16+i}, v{64+i}, v{65+i}, v5" for i in range(32))
bodies['perm'] = "\n".join(f"    v_perm_b32 v{16+i}, v{64+i}, v{65+i}, v5" for i in range(32))
bodies['mfma32'] = "\n".join(f"    v_mfma_f32_32x32x16_bf16 v[{16+16*(i%2)}:{31+16*(i%2)}], v[64:67], v[68:71], v[{16+16*(i%2)}:{31+16*(i%2)}]" for i in range(8))
bodies['mfma16'] = "\n".join(f"    v_mfma_f32_16x16x32_bf16 v[{16+4*(i%4)}:{19+4*(i%4)}], v[64:67], v[68:71], v[{16+4*(i%4)}:{19+4*(i%4)}]" for i in range(16))
bodies['expadd'] = "\n".join(f"    v_exp_f32 v{16+i}, v{64+i}\n    v_add_f32 v{32+i}, v{80+i}, v4" for i in range(16))
def attn(nt=2):
    out=[]
    for t in range(nt):
        Sw = 16+16*(t%2)
        Sr = 16+16*((t+1)%2)
        seq=[]
        m = [f"    v_mfma_f32_32x32x16_bf16 v[{Sw}:{Sw+15}], v[64:67], v[80:83], 0",
             f"    v_mfma_f32_32x32x16_bf16 v[{Sw}:{Sw+15}], v[68:71], v[84:87], v[{Sw}:{Sw+15}]",
             f"    v_mfma_f32_32x32x16_bf16 v[48:63], v[72:75], v[{88+8*(t%2)}:{91+8*(t%2)}], v[48:63]",
             f"    v_mfma_f32_32x32x16_bf16 v[48:63], v[76:79], v[{92+8*(t%2)}:{95+8*(t%2)}], v[48:63]"]
        Pw = 88+8*((t+1)%2)
        for q in range(4):
            seq.append(m[q])
            for j in range(4):
                seq.append(f"    v_exp_f32 v{Sr+4*q+j}, v{Sr+4*q+j}")
            if q>0:
                seq.append(f"    v_cvt_pk_bf16_f32 v{Pw+2*(q-1)}, v{Sr+4*(q-1)}, v{Sr+4*(q-1)+1}")
                seq.append(f"    v_cvt_pk_bf16_f32 v{Pw+2*(q-1)+1}, v{Sr+4*(q-1)+2}, v{Sr+4*(q-1)+3}")
        seq.append(f"    v_cvt_pk_bf16_f32 v{Pw+6}, v{Sr+12}, v{Sr+13}")
        seq.append(f"    v_cvt_pk_bf16_f32 v{Pw+7}, v{Sr+14}, v{Sr+15}")
        out += seq
    return "\n".join(out)
bodies['attn'] = attn(2)
def attn_v(use_mfma=True,use_cvt=True,use_exp=True,nmax=0):
    b = attn(2).split("\n")
    o=[]
    for l in b:
        if 'mfma' in l:
            if use_mfma: o.append(l)
            for k in range(nmax): o.append(f"    v_max3_f32 v{112+k}, v{113+k}, v5, v6")
            continue
        if 'cvt' in l and not use_cvt: continue
        if 'exp' in l and not use_exp: continue
        o.append(l)
    return "\n".join(o)
bodies['attn_nomfma'] = attn_v(use_mfma=False)
bodies['attn_nocvt'] = attn_v(use_cvt=False)
bodies['attn_max'] = attn_v(nmax=2)
txt = ".amdgcn_target \"amdgcn-amd-amdhsa--gfx950\"\n.text\n"
names=[]
for W in (4,8,16):
    for k,b in bodies.items():
        n=f"k_{k}_w{W}"
        names.append(n)
        txt += kernel(n,b,1000,NV).replace("WAVES",str(W))
txt += '.section .rodata,"a"\n.p2align 6\n'
for n in names:
    txt += desc(n,NV) + ".p2align 6\n"
txt += meta(names,NV)
open("mb1.s","w").write(txt)
args=[]
for W in (4,8,16):
    for k in bodies:
        args += [f"k_{k}_w{W}","256",str(W*64),"0"]
open("mb1.args","w").write(" ".join(args))
```

```python
from gen1 import kernel, desc, meta, attn
NV=128
bodies={}
R=4
def rep(s): return "\n".join([s]*R)
bodies['exp16'] = rep("\n".join(f"    v_exp_f16 v{16+i}, v{64+i}" for i in range(32)))
bodies['sdwamov'] = rep("\n".join(f"    v_mov_b32_sdwa v{16+i}, v{64+i} dst_sel:WORD_0 dst_unused:UNUSED_PRESERVE src0_sel:WORD_1" for i in range(32)))
bodies['andor'] = rep("\n".join(f"    v_and_or_b32 v{16+i}, v{64+i}, v4, v{65+i}" for i in range(32)))
bodies['mul'] = rep("\n".join(f"    v_mul_f32 v{16+i}, v{64+i}, v4" for i in range(32)))
bodies['and'] = rep("\n".join(f"    v_and_b32 v{16+i}, v{64+i}, v4" for i in range(32)))
bodies['lshl'] = rep("\n".join(f"    v_lshlrev_b32 v{16+i}, 16, v{64+i}" for i in range(32)))
bodies['pkmul'] = rep("\n".join(f"    v_pk_mul_f32 v[{16+2*(i%16)}:{17+2*(i%16)}], v[{64+2*(i%16)}:{65+2*(i%16)}], v[4:5]" for i in range(32)))
bodies['dot2c'] = rep("\n".join(f"    v_dot2c_f32_bf16 v{16+i}, v{64+i}, v{64+i}" for i in range(32)))
bodies['rcp'] = rep("\n".join(f"    v_rcp_f32 v{16+i}, v{64+i}" for i in range(32)))
bodies['cvtpkrtz'] = rep("\n".join(f"    v_cvt_pkrtz_f16_f32 v{16+i}, v{64+i}, v{65+i}" for i in range(32)))
a = attn(2)
bodies['attn'] = rep(a)
def ins_after_mfma(extra, every=1):
    out=[];k=0
    for l in rep(a).split("\n"):
        out.append(l)
        if 'mfma' in l:
            k+=1
            if k%every==0: out.append(extra(k))
    return "\n".join(out)
bodies['attn_snop'] = ins_after_mfma(lambda k:"    s_nop 0")
bodies['attn_sadd'] = ins_after_mfma(lambda k:"    s_add_u32 s20, s20, 4")
bodies['attn_wait'] = ins_after_mfma(lambda k:"    s_waitcnt vmcnt(8)")
bodies['attn_ld4'] = ins_after_mfma(lambda k:f"    global_load_dwordx4 v[{112+4*((k//4)%4)}:{115+4*((k//4)%4)}], v3, s[4:5]", every=4)
bodies['attn_ld2'] = ins_after_mfma(lambda k:f"    global_load_dwordx4 v[{112+4*((k//2)%4)}:{115+4*((k//2)%4)}], v3, s[4:5]", every=2)
bodies['attn_ds1'] = ins_after_mfma(lambda k:f"    ds_read_b128 v[{112+4*(k%4)}:{115+4*(k%4)}], v3", every=1)
bodies['attn_sdwa'] = "\n".join((l if 'cvt' not in l else "    v_mov_b32_sdwa %s, %s dst_sel:WORD_0 dst_unused:UNUSED_PRESERVE src0_sel:WORD_1" % (l.split()[1].rstrip(','), l.split()[2].rstrip(','))) for l in rep(a).split("\n"))
bodies['attn_add'] = "\n".join((l if 'cvt' not in l else "    v_add_f32 %s, %s, %s" % (l.split()[1].rstrip(','), l.split()[2].rstrip(','), l.split()[3])) for l in rep(a).split("\n"))
pre="    v_and_b32 v3, 63, v0\n    v_lshlrev_b32 v3, 4, v3\n"
txt = ".amdgcn_target \"amdgcn-amd-amdhsa--gfx950\"\n.text\n"
names=[];args=[]
for W in (4,8):
    for k,b in bodies.items():
        n=f"k_{k}_w{W}"; names.append(n)
        txt += kernel(n,b,250,NV,pre).replace("WAVES",str(W))
        args += [n,"256",str(W*64),"4096"]
txt += '.section .rodata,"a"\n.p2align 6\n'
for n in names: txt += desc(n,NV) + ".p2align 6\n"
txt += meta(names,NV)
open("mb5.s","w").write(txt); open("mb5.args","w").write(" ".join(args))
```

```python
import re

REG_RE = re.compile(r'(?<![\w.])([vas])(?:(\d+)|\[(\d+):(\d+)\])(?![\w])')
TRANS = ('v_exp_', 'v_log_', 'v_rcp_', 'v_rsq_', 'v_sqrt_', 'v_sin_', 'v_cos_')


def regs_of(op):
    out = set()
    op = op.strip()
    o = op.replace('|', '').replace('-', '').replace('abs(', '').replace(')', '').replace('neg(', '')
    if o == 'vcc':
        return {('s', 106), ('s', 107)}
    if o == 'vcc_lo':
        return {('s', 106)}
    if o == 'vcc_hi':
        return {('s', 107)}
    if o == 'exec':
        return {('s', 126), ('s', 127)}
    if o == 'exec_lo':
        return {('s', 126)}
    if o == 'exec_hi':
        return {('s', 127)}
    if o == 'm0':
        return {('s', 124)}
    m = REG_RE.fullmatch(o)
    if m:
        k = m.group(1)
        if m.group(2) is not None:
            out.add((k, int(m.group(2))))
        else:
            for i in range(int(m.group(3)), int(m.group(4)) + 1):
                out.add((k, i))
    return out


VCC = {('s', 106), ('s', 107)}
EXEC = {('s', 126), ('s', 127)}
M0 = {('s', 124)}


class Ins:
    __slots__ = ('text', 'mn', 'ops', 'mods', 'kind', 'wr', 'rd', 'passes', 'A', 'B', 'C', 'label', 'target',
                 'trans', 'dpp', 'dl', 'lds_dma', 'store_data', 'wide_store', 'states', 'sgpr_rd_vmem', 'comment')

    def __init__(self, text):
        self.text = text
        self.label = None
        self.target = None
        self.kind = 'other'
        self.wr = set()
        self.rd = set()
        self.passes = 0
        self.A = self.B = self.C = set()
        self.trans = self.dpp = self.dl = self.lds_dma = self.wide_store = False
        self.store_data = set()
        self.states = 1
        t = text.split(';')[0].strip()
        if text.startswith(';;use'):
            self.kind = 'need'
            self.states = 0
            self.mn = ''
            for o in text.split()[1:]:
                self.rd |= regs_of(o)
            return
        if text.startswith(';;need'):
            self.kind = 'need'
            self.states = 0
            self.mn = ''
            self.rd = {('t', n) for n in text.split()[1:]}
            return
        if not t:
            self.kind = 'blank'
            self.states = 0
            self.mn = ''
            return
        if t.endswith(':'):
            self.kind = 'label'
            self.label = t[:-1]
            self.states = 0
            self.mn = ''
            return
        if t.startswith('.'):
            self.kind = 'directive'
            self.states = 0
            self.mn = t
            return
        parts = t.split(None, 1)
        mn = parts[0]
        self.mn = mn
        rest = parts[1] if len(parts) > 1 else ''
        ops = []
        cur = ''
        depth = 0
        for ch in rest:
            if ch == '[' or ch == '(':
                depth += 1
            if ch == ']' or ch == ')':
                depth -= 1
            if ch == ',' and depth == 0:
                ops.append(cur.strip())
                cur = ''
            else:
                cur += ch
        if cur.strip():
            ops.append(cur.strip())
        mods = []
        if ops:
            lp = ops[-1].split()
            if lp:
                ops[-1] = lp[0]
                mods = lp[1:]
        self.ops = ops
        self.mods = mods
        R = [regs_of(o) for o in ops]
        if mn.startswith('v_mfma'):
            self.kind = 'mfma'
            self.passes = 8 if '32x32x16' in mn else 4 if '16x16x32' in mn else None
            assert self.passes, mn
            self.wr = R[0]
            self.A, self.B, self.C = R[1], R[2], R[3]
            self.rd = R[1] | R[2] | R[3]
        elif mn.startswith('v_'):
            self.kind = 'valu'
            self.trans = mn.startswith(TRANS)
            self.dpp = '_dpp' in mn or any(m.startswith(('row_', 'quad_perm', 'wave_')) for m in mods)
            self.dl = mn.startswith('v_dot')
            if mn.startswith('v_permlane') and 'swap' in mn:
                self.wr = R[0] | R[1]
                self.rd = R[0] | R[1]
            elif mn.startswith('v_cmpx'):
                self.wr = R[0] | EXEC
                self.rd = set().union(*R[1:])
            elif mn.startswith(('v_add_co', 'v_sub_co', 'v_subrev_co', 'v_addc_co', 'v_subb_co', 'v_mad_u64_u32', 'v_div_scale')):
                self.wr = R[0] | R[1]
                self.rd = set().union(*R[2:])
            elif mn == 'v_nop':
                pass
            else:
                self.wr = R[0]
                self.rd = set().union(*R[1:]) if len(R) > 1 else set()
                if mn.startswith(('v_fmac', 'v_dot2c', 'v_dot4c', 'v_pk_fmac', 'v_writelane')) or 'UNUSED_PRESERVE' in t or self.dpp:
                    self.rd |= R[0]
                if mn.startswith('v_cndmask') and len(ops) == 3:
                    self.rd |= VCC
        elif mn.startswith(('buffer_', 'global_', 'flat_')):
            self.kind = 'vmem'
            is_lds = 'lds' in mods or '_lds_' in mn
            if 'load' in mn:
                if is_lds:
                    self.lds_dma = True
                    self.rd = set().union(*R) | M0
                else:
                    self.wr = R[0]
                    self.rd = set().union(*R[1:])
            elif 'store' in mn or 'atomic' in mn:
                self.rd = set().union(*R)
                di = 0 if mn.startswith('buffer_') else 1
                self.store_data = R[di]
                self.wide_store = len(R[di]) >= 3
                if 'atomic' in mn and 'sc0' in mods:
                    self.wr = R[0]
            else:
                pass
            mt = re.search(r';\s*tag=(\S+)', text)
            if mt:
                self.wr = set(self.wr) | {('t', mt.group(1))}
        elif mn.startswith('ds_'):
            self.kind = 'ds'
            if mn.startswith(('ds_read', 'ds_bpermute', 'ds_permute', 'ds_swizzle')) or '_rtn' in mn:
                self.wr = R[0]
                self.rd = set().union(*R[1:])
            else:
                self.rd = set().union(*R)
        elif mn.startswith('s_'):
            if mn.startswith(('s_load', 's_buffer_load', 's_memtime', 's_memrealtime')):
                self.kind = 'smem'
                self.wr = R[0]
                self.rd = set().union(*R[1:]) if len(R) > 1 else set()
            elif mn == 's_nop':
                self.kind = 'nop'
                self.states = int(ops[0], 0) + 1
            elif mn == 's_waitcnt':
                self.kind = 'wait'
            elif mn in ('s_branch',) or mn.startswith('s_cbranch'):
                self.kind = 'branch'
                self.target = ops[0]
            elif mn in ('s_endpgm',):
                self.kind = 'end'
            elif mn in ('s_barrier', 's_setprio', 's_sleep'):
                self.kind = 'salu'
            elif mn.startswith(('s_cmp', 's_bitcmp')):
                self.kind = 'salu'
                self.rd = set().union(*R)
            else:
                self.kind = 'salu'
                self.wr = R[0] if R else set()
                self.rd = set().union(*R[1:]) if len(R) > 1 else set()
                if 'saveexec' in mn:
                    self.wr = self.wr | EXEC
                    self.rd = self.rd | EXEC
                if mn.startswith(('s_addk', 's_mulk')):
                    self.rd |= R[0]
        else:
            raise ValueError('unknown instruction: ' + text)


def vg(s):
    return {r for r in s if r[0] in 'va'}


def sg(s):
    return {r for r in s if r[0] == 's'}


def need_states(p, c):
    n = 0
    if p.kind == 'valu':
        pw_v = vg(p.wr)
        pw_s = sg(p.wr)
        if c.kind == 'mfma' and pw_v & c.rd:
            n = max(n, 3 if p.dl else 2)
        if c.kind == 'mfma' and pw_s & EXEC:
            n = max(n, 4)
        if c.kind == 'valu':
            if p.trans and not c.trans and pw_v & (c.rd):
                n = max(n, 1)
            if p.trans and c.trans and pw_v & c.rd:
                n = max(n, 1)
            if p.dl and pw_v & (c.rd | c.wr):
                same = (p.mn == c.mn)
                srcab = set()
                if same:
                    Rr = [regs_of(o) for o in c.ops]
                    srcab = Rr[1] | Rr[2]
                if (not same) or (pw_v & srcab):
                    n = max(n, 3)
            if c.dpp and pw_v & c.rd:
                n = max(n, 2)
            if c.dpp and pw_s & EXEC:
                n = max(n, 5)
            if c.mn.startswith('v_permlane') and pw_v & c.rd:
                n = max(n, 2)
            if c.mn.startswith('v_permlane') and pw_s & EXEC:
                n = max(n, 4)
            if c.mn.startswith(('v_readlane', 'v_readfirstlane')) and pw_v & c.rd:
                n = max(n, 1)
            if c.mn.startswith(('v_readlane', 'v_readfirstlane', 'v_writelane')) and pw_s & EXEC:
                n = max(n, 4)
            if pw_s & sg(c.rd):
                n = max(n, 4 if c.mn.startswith(('v_readlane', 'v_writelane', 'v_div_fmas')) else 2)
            if ('sdwa' in p.mn or 'op_sel' in p.text) and pw_v & (c.rd | c.wr):
                n = max(n, 1)
        if c.kind == 'vmem' and pw_s & sg(c.rd):
            n = max(n, 5)
        if p.dl and c.kind in ('vmem', 'ds') and pw_v & c.rd:
            n = max(n, 3)
        if c.kind in ('salu', 'branch', 'smem') and pw_s & sg(c.rd):
            n = max(n, 1)
        if c.kind == 'branch' and c.mn in ('s_cbranch_vccz', 's_cbranch_vccnz') and pw_s & VCC:
            n = max(n, 5)
        if c.kind == 'branch' and c.mn in ('s_cbranch_execz', 's_cbranch_execnz') and pw_s & EXEC:
            n = max(n, 5)
    if p.kind == 'mfma':
        D = p.wr
        big = {4: 8, 8: 12}[p.passes]
        if c.kind == 'mfma':
            if D & (c.A | c.B):
                n = max(n, big)
            if D & c.C:
                if not (c.C == D and c.passes == p.passes):
                    n = max(n, {4: 6, 8: 10}[p.passes])
            elif D & c.wr:
                n = max(n, {4: 6, 8: 10}[p.passes])
        elif c.kind == 'valu':
            if D & (c.rd | c.wr):
                n = max(n, big)
            if p.C & vg(c.wr):
                n = max(n, {4: 3, 8: 7}[p.passes])
        elif c.kind in ('vmem', 'ds'):
            if D & (c.rd | c.wr):
                n = max(n, big)
            if p.C & vg(c.wr):
                n = max(n, {4: 3, 8: 7}[p.passes])
    if p.kind == 'salu' and p.wr & M0:
        if c.kind == 'vmem' and c.lds_dma:
            n = max(n, 1)
        if c.kind == 'ds' and 'addtid' in c.mn:
            n = max(n, 1)
    if p.kind == 'vmem' and p.wide_store:
        if p.store_data & vg(c.wr):
            n = max(n, 2 if c.kind in ('valu', 'mfma') else 1)
    if p.kind == 'ds' and p.mn.startswith(('ds_write_b128', 'ds_write_b96')):
        pass
    return n


class Prog:
    def __init__(self):
        self.ins = []

    def __call__(self, text):
        for line in text.split('\n'):
            line = line.strip()
            if line:
                self.ins.append(Ins(line))

    def label(self, name):
        self.ins.append(Ins(name + ':'))

    def traces(self, ins):
        lab = {x.label: i for i, x in enumerate(ins) if x.kind == 'label'}
        starts = [i for i, x in enumerate(ins) if x.kind == 'label' and x.label.endswith('_kernel')]
        out = []

        def run(start, take):
            tr = []
            i = start
            cnt = {}
            steps = 0
            while i < len(ins) and steps < 400000:
                steps += 1
                x = ins[i]
                tr.append(i)
                if x.kind == 'end':
                    break
                if x.kind == 'branch':
                    t = lab[x.target]
                    if x.mn == 's_branch':
                        if t <= i:
                            cnt[i] = cnt.get(i, 0) + 1
                            if cnt[i] > 2:
                                break
                        i = t
                        continue
                    if t <= i:
                        cnt[i] = cnt.get(i, 0) + 1
                        if cnt[i] <= 2:
                            i = t
                            continue
                        cnt[i] = 0
                    elif i in take:
                        i = t
                        continue
                i += 1
            return tr

        for s in starts:
            main = run(s, set())
            out.append(main)
            seen = set(main)
            todo = [i for i in main if ins[i].kind == 'branch' and ins[i].mn != 's_branch' and lab[ins[i].target] > i]
            done = set()
            work = [(b, (b,)) for b in dict.fromkeys(todo)]
            while work:
                b, takes = work.pop()
                if b in done:
                    continue
                done.add(b)
                tr = run(s, set(takes))
                out.append(tr)
                for i in tr:
                    if i not in seen:
                        seen.add(i)
                        if ins[i].kind == 'branch' and ins[i].mn != 's_branch' and lab[ins[i].target] > i and i not in done:
                            work.append((i, takes + (i,)))
        return out

    def auto_waits(self):
        for _ in range(50):
            ins = self.ins
            need = {}
            for tr in self.traces(ins):
                vq = []
                lq = []
                for i in tr:
                    x = ins[i]
                    if x.kind in ('blank', 'label', 'directive'):
                        continue
                    if x.kind == 'wait':
                        m = re.search(r'vmcnt\((\d+)\)', x.text)
                        if m:
                            n = int(m.group(1))
                            vq = vq[len(vq) - n:] if n < len(vq) else vq
                            if n == 0:
                                vq = []
                        m = re.search(r'lgkmcnt\((\d+)\)', x.text)
                        if m:
                            n = int(m.group(1))
                            if n == 0:
                                lq = []
                            elif not any(k == 'smem' for k, _ in lq):
                                lq = lq[len(lq) - n:] if n < len(lq) else lq
                        continue
                    touch = x.rd | x.wr
                    vm = None
                    for j in range(len(vq) - 1, -1, -1):
                        if vq[j] & touch:
                            if x.kind == 'vmem' and not (vq[j] & x.rd):
                                continue
                            vm = len(vq) - 1 - j
                            break
                    lg = None
                    for j in range(len(lq) - 1, -1, -1):
                        if lq[j][1] & touch:
                            if x.kind == 'ds' and lq[j][0] == 'ds' and not (lq[j][1] & x.rd):
                                continue
                            lg = len(lq) - 1 - j
                            if any(k == 'smem' for k, _ in lq):
                                lg = 0
                            break
                    if vm is not None or lg is not None:
                        e = need.setdefault(i, [None, None])
                        if vm is not None:
                            vm = min(vm, 63)
                            e[0] = vm if e[0] is None else min(e[0], vm)
                            vq = vq[len(vq) - vm:] if vm else []
                        if lg is not None:
                            lg = min(lg, 15)
                            e[1] = lg if e[1] is None else min(e[1], lg)
                            lq = lq[len(lq) - lg:] if lg else []
                    if x.kind == 'vmem':
                        vq.append(set(x.wr))
                    elif x.kind == 'ds':
                        lq.append(('ds', set(x.wr)))
                    elif x.kind == 'smem':
                        lq.append(('smem', set(x.wr)))
            if not need:
                return
            new = []
            for i, x in enumerate(ins):
                if i in need:
                    vm, lg = need[i]
                    t = 's_waitcnt'
                    if vm is not None:
                        t += f' vmcnt({vm})'
                    if lg is not None:
                        t += f' lgkmcnt({lg})'
                    new.append(Ins(t))
                new.append(x)
            self.ins = new
        raise RuntimeError('auto_waits did not converge')

    def auto_nops(self):
        for _ in range(50):
            ins = self.ins
            need = {}
            for tr in self.traces(ins):
                real = [i for i in tr if ins[i].states > 0]
                for pos, i in enumerate(real):
                    c = ins[i]
                    if c.kind in ('nop', 'wait', 'end'):
                        continue
                    dist = need.get(i, 0)
                    q = pos - 1
                    req = 0
                    while q >= 0 and dist < 20:
                        p = ins[real[q]]
                        n = need_states(p, c)
                        if n > dist:
                            req = max(req, n - dist)
                        dist += p.states + need.get(real[q], 0)
                        q -= 1
                    if req:
                        need[i] = need.get(i, 0) + req
            if not need:
                return
            new = []
            for i, x in enumerate(ins):
                if i in need:
                    n = need[i]
                    while n > 0:
                        k = min(n, 16)
                        new.append(Ins(f's_nop {k - 1}'))
                        n -= k
                new.append(x)
            self.ins = new
        raise RuntimeError('auto_nops did not converge')

    def finish(self):
        self.auto_waits()
        self.auto_nops()

    def text(self):
        out = []
        for x in self.ins:
            if x.kind in ('label', 'directive'):
                out.append(x.text)
            else:
                out.append('    ' + x.text)
        return '\n'.join(out) + '\n'

    def max_regs(self):
        mx = {'v': -1, 'a': -1, 's': -1}
        for x in self.ins:
            for k, i in (x.rd | x.wr):
                if k == 't' or (k == 's' and i >= 102):
                    continue
                mx[k] = max(mx[k], i)
        return mx


def vr(b, n=1, k='v'):
    return f'{k}{b}' if n == 1 else f'{k}[{b}:{b + n - 1}]'


def sr(b, n=1):
    return vr(b, n, 's')


def ar(b, n=1):
    return vr(b, n, 'a')


def interleave(primary, secondary, start=0, is_slot=lambda t: t.startswith('v_mfma')):
    slots = [i for i, t in enumerate(primary) if is_slot(t)][start:]
    out = []
    n, m = len(secondary), len(slots)
    k = 0
    si = 0
    for i, t in enumerate(primary):
        out.append(t)
        if si < m and i == slots[si]:
            si += 1
            upto = (n * si + m - 1) // m
            while k < upto:
                out.append(secondary[k])
                k += 1
    out.extend(secondary[k:])
    return out
```

```python
import json
import math
import os
import struct
import sys
from asmlib import Prog, vr, sr, ar, interleave

NAME = 'interleave_layers__grouped_kv_mqa__dense_activation_gelu__prompt'
S, D, H, DH, F = 2048, 448, 16, 28, 1792
KS = 14
KB = 56
STAMP = int(os.environ.get('STAMP', '0'))
WS_STAMP = 200 << 20


def f32(x):
    return '0x%08x' % struct.unpack('<I', struct.pack('<f', x))[0]


_off = 0


def alloc(n):
    global _off
    o = _off
    _off += (n + 4095) // 4096 * 4096
    return o


ACT = 128 * KS * 1024
WS_WO = alloc(7 * 16 * 4096)
WS_W1 = alloc(16 * KS * 7168 + 4096)
WS_W2 = alloc(7 * KB * 4096)
WS_X2 = alloc(ACT)
WS_X2N = alloc(ACT)
WS_CNT = alloc(2 * 4 * 16 * 128)
LAY = []
for L in range(2):
    LAY.append(dict(QF=alloc(64 * 16 * 2048), KV=alloc(64 * 4096), OF=alloc(128 * 16 * 1024), X1F=alloc(ACT),
                    ST1=alloc(128 * 1024), HF=alloc(128 * KB * 1024), CNT=WS_CNT + L * 8192))
WS_END = _off

K_AX, K_WQ, K_WK, K_WV, K_WO, K_BX, K_W1, K_B1, K_W2, K_B2, K_OUT, K_DBG, K_WS = [8 * i for i in range(13)]
QSCALE = DH ** -0.5 * math.log2(math.e)
MF16 = 'v_mfma_f32_16x16x32_bf16'
MF32 = 'v_mfma_f32_32x32x16_bf16'
ONES = '0x3f803f80'

kernels = []
LAUNCH_ID = {'qkv1_kernel': 0, 'x1_kernel': 1, 'x2_kernel': 2}
NST = 16


def stamp(p, i):
    if STAMP:
        p('s_memrealtime s[100:101]')
        p('s_waitcnt lgkmcnt(0)')
        p(f'v_writelane_b32 v255, s100, {i}')


def endpgm(p):
    if STAMP:
        p('s_waitcnt vmcnt(0)')
        stamp(p, 15)
        p(f's_load_dwordx2 s[96:97], s[0:1], {K_WS}')
        p('s_lshl_b32 s98, s2, 2')
        p('s_add_u32 s98, s98, s8')
        p('s_lshl_b32 s98, s98, 6')
        p('s_lshl_b32 s99, s3, 17')
        p('s_add_u32 s98, s98, s99')
        p(f's_add_u32 s98, s98, {WS_STAMP}')
        p('s_mov_b64 exec, -1')
        p('v_and_b32 v254, 63, v0')
        p('v_lshl_add_u32 v254, v254, 2, s98')
        p('s_mov_b64 exec, 0xffff')
        p('global_store_dword v254, v255, s[96:97]')
    p('s_endpgm')


def srd(p, base, ptr, nbytes):
    p(f's_mov_b32 s{base}, s{ptr}')
    p(f's_and_b32 s{base + 1}, s{ptr + 1}, 0xffff')
    p(f's_mov_b32 s{base + 2}, {nbytes}')
    p(f's_mov_b32 s{base + 3}, 0x20000')


def entry(p, label):
    p('.p2align 8')
    p(f'.globl {label}')
    p(f'.type {label},@function')
    p.label(label)
    if STAMP:
        p(f's_mov_b32 s3, {LAUNCH_ID[label]}')
        p('v_mov_b32 v255, 0')
        stamp(p, 0)


def lane_setup(p):
    p('v_lshrrev_b32 v1, 6, v0')
    p('v_readfirstlane_b32 s8, v1')
    p('v_and_b32 v1, 63, v0')
    p('v_lshlrev_b32 v2, 4, v1')
    p('v_and_b32 v3, 15, v1')
    p('v_lshrrev_b32 v4, 4, v1')
    p('s_and_b32 s9, s2, 7')
    p('s_lshl_b32 s9, s9, 1')
    p('s_lshr_b32 s10, s2, 7')
    p('s_add_u32 s9, s9, s10')
    p('s_bfe_u32 s10, s2, 0x40003')


def allreduce_g(p, v, t, op='v_add_f32'):
    p(f'v_mov_b32 v{t}, v{v}')
    p(f'v_permlane16_swap_b32 v{v}, v{t}')
    p(f'{op} v{v}, v{v}, v{t}')
    p(f'v_mov_b32 v{t}, v{v}')
    p(f'v_permlane32_swap_b32 v{v}, v{t}')
    p(f'{op} v{v}, v{v}, v{t}')


def allreduce_g2(p, a, ta, b, tb):
    for sw in ('v_permlane16_swap_b32', 'v_permlane32_swap_b32'):
        p(f'v_mov_b32 v{ta}, v{a}')
        p(f'v_mov_b32 v{tb}, v{b}')
        p(f'{sw} v{a}, v{ta}')
        p(f'{sw} v{b}, v{tb}')
        p(f'v_add_f32 v{a}, v{a}, v{ta}')
        p(f'v_add_f32 v{b}, v{b}, v{tb}')


def var_from(p, s1, s2, mu, t):
    p(f'v_mul_f32 v{mu}, {f32(1.0 / D)}, v{s1}')
    p(f'v_mul_f32 v{t}, {f32(1.0 / D)}, v{s2}')
    p(f'v_fma_f32 v{t}, -v{mu}, v{mu}, v{t}')
    p(f'v_max_f32 v{t}, 0, v{t}')
    p(f'v_add_f32 v{t}, {f32(1e-5)}, v{t}')


QW_E, QW_O = 240, 241
QK_E, QK_O = 242, 243


def qkv_wdma_setup(p):
    p('v_lshrrev_b32 v5, 3, v1')
    p('v_and_b32 v6, 7, v1')
    p('v_bfe_u32 v7, v1, 4, 1')
    p('v_lshlrev_b32 v7, 1, v7')
    p('v_xor_b32 v6, v6, v7')
    p('v_xor_b32 v7, 4, v6')
    p('s_lshl_b32 s56, s8, 4')
    p('v_add_u32 v5, s56, v5')
    p(f'v_mul_u32_u24 v{QW_E}, 896, v5')
    p(f'v_add_u32 v{QW_O}, {8 * 896}, v{QW_E}')
    p(f'v_lshl_add_u32 v{QW_E}, v6, 4, v{QW_E}')
    p(f'v_lshl_add_u32 v{QW_O}, v7, 4, v{QW_O}')
    p('v_and_b32 v6, 3, v6')
    p('v_lshlrev_b32 v6, 4, v6')
    p('v_min_u32 v6, 40, v6')
    p(f'v_mad_u32_u24 v{QK_E}, v5, 56, v6')
    p(f'v_add_u32 v{QK_O}, {8 * 56}, v{QK_E}')


def qkv_wdma(p, G, kv, wbase, tag):
    out = []
    if not kv:
        out += ['s_mov_b32 m0, s58', 's_add_u32 s59, s58, 1024',
                f'buffer_load_dwordx4 v{QW_E}, s[32:35], s57 offen lds ; tag={tag}',
                's_mov_b32 m0, s59', 's_add_u32 s58, s58, 8192',
                f'buffer_load_dwordx4 v{QW_O}, s[32:35], s57 offen lds ; tag={tag}',
                f's_add_u32 s57, s57, {64 * 896}']
    else:
        out += ['s_mov_b32 m0, s58', 's_mov_b64 exec, s[60:61]',
                f'buffer_load_dwordx4 v{QK_E}, s[36:39], s57 offen lds ; tag={tag}',
                's_mov_b64 exec, s[62:63]',
                f'buffer_load_dwordx4 v{QK_E}, s[40:43], s57 offen lds ; tag={tag}',
                's_add_u32 m0, m0, 1024', 's_add_u32 s58, s58, 8192',
                f'buffer_load_dwordx4 v{QK_O}, s[36:39], s57 offen lds ; tag={tag}',
                's_mov_b64 exec, s[60:61]',
                f'buffer_load_dwordx4 v{QK_O}, s[40:43], s57 offen lds ; tag={tag}',
                's_mov_b64 exec, -1',
                f's_add_u32 s57, s57, {64 * 56}']
    return out


def qkv_wdma_init(p, kv, wbase):
    if kv:
        p('s_mov_b32 s57, 0')
        p('s_mov_b32 s60, 0x0f0f0f0f')
        p('s_mov_b32 s61, 0x0f0f0f0f')
        p('s_mov_b32 s62, 0xf0f0f0f0')
        p('s_mov_b32 s63, 0xf0f0f0f0')
    else:
        p('s_lshl_b32 s57, s54, 7')
    p('s_lshl_b32 s58, s8, 11')
    p(f's_add_u32 s58, s58, {wbase}')


def qkv_core(p, kv, lds_x, wbase, misc, XR, pre_group=None, stfl=''):
    ACC, SUM, GRM, CSM = 8, 24, 28, 32
    ON = 36
    WF = 40
    WA = 88
    SA = 96
    CS = 100
    T = 116
    for r in range(4):
        p(f'v_mov_b32 v{ON + r}, {ONES}')
    p('v_lshrrev_b32 v5, 2, v3')
    p('v_lshlrev_b32 v6, 7, v5')
    p('v_lshl_add_u32 v6, v4, 10, v6')
    p('v_and_b32 v7, 3, v1')
    p('v_lshl_add_u32 v6, v7, 3, v6')
    p(f'v_add_u32 v6, {wbase}, v6')
    p('v_lshrrev_b32 v5, 1, v5')
    p('v_and_b32 v7, 1, v4')
    p('v_lshl_or_b32 v5, v7, 1, v5')
    for nt in range(4):
        p(f'v_xor_b32 v7, {nt}, v5')
        p(f'v_lshl_add_u32 v{WA + nt}, v7, 5, v6')
    p('v_xor_b32 v7, s8, v5')
    p(f'v_lshl_add_u32 v{WA + 4}, v7, 5, v6')
    if not kv:
        p('s_lshr_b32 s64, s53, 1')
        p('s_lshl_b32 s64, s64, 15')
        p('s_add_u32 s64, s64, s51')
        p('s_and_b32 s65, s53, 1')
        p('s_lshl_b32 s65, s65, 8')
        p('s_add_u32 s64, s64, s65')
        p('s_lshl_b32 s65, s54, 4')
        for nt in range(4):
            p(f'v_add_u32 v5, s65, v4')
            if nt:
                p(f'v_add_u32 v5, {4 * nt}, v5')
            p('v_mul_u32_u24 v6, 147, v5')
            p('v_lshrrev_b32 v6, 10, v6')
            p('v_mul_u32_u24 v7, 7, v6')
            p('v_sub_u32 v5, v5, v7')
            p('v_lshlrev_b32 v6, 11, v6')
            p('v_lshl_add_u32 v6, v3, 4, v6')
            p('v_lshrrev_b32 v7, 1, v5')
            p('v_lshl_add_u32 v6, v7, 9, v6')
            p('v_and_b32 v5, 1, v5')
            p(f'v_lshl_add_u32 v{SA + nt}, v5, 3, v6')
    else:
        p('s_lshr_b32 s64, s53, 1')
        p('s_lshl_b32 s64, s64, 12')
        p('s_add_u32 s64, s64, s52')
        p('s_and_b32 s65, s53, 1')
        p('s_lshl_b32 s66, s65, 8')
        p('v_lshl_add_u32 v5, v3, 4, s66')
        p('v_lshrrev_b32 v6, 1, v4')
        p('v_lshl_add_u32 v5, v6, 9, v5')
        p('v_and_b32 v7, 1, v4')
        p(f'v_lshl_add_u32 v{SA}, v7, 3, v5')
        p('v_xor_b32 v7, v7, v6')
        p(f'v_lshl_add_u32 v{SA + 1}, v7, 3, v5')
        p('s_lshl_b32 s66, s65, 10')
        p('v_and_b32 v7, 1, v4')
        p('v_lshl_add_u32 v5, v7, 9, s66')
        p('v_lshl_add_u32 v5, v6, 3, v5')
        p(f'v_lshl_add_u32 v{SA + 2}, v3, 4, v5')
        p('v_lshrrev_b32 v6, 3, v3')
        p('v_lshlrev_b32 v6, 2, v6')
        p('v_xor_b32 v6, v6, v3')
        p(f'v_lshl_add_u32 v{SA + 3}, v6, 4, v5')

    def reads(ks):
        G, s = ks // 2, ks % 2
        b = WF + 24 * (ks % 2)
        o = []
        if lds_x:
            o.append(f'ds_read_b128 {vr(b + 20, 4)}, v{244 + s} offset:{G * 8192}')
        for t in range(5):
            for hf in range(2):
                o.append(f'ds_read_b64_tr_b16 {vr(b + 4 * t + 2 * hf, 2)}, v{WA + t} offset:{G * 8192 + s * 4096 + hf * 512}')
        return o

    def mfmas(ks):
        b = WF + 24 * (ks % 2)
        x = vr(b + 20, 4) if lds_x else vr(XR + 4 * ks, 4)
        o = []

        def c(r):
            return '0' if ks == 0 else vr(r, 4)
        o.append(f'{MF16} {vr(SUM, 4)}, {vr(ON, 4)}, {x}, {c(SUM)}')
        o.append(f'{MF16} {vr(GRM, 4)}, {x}, {x}, {c(GRM)}')
        for nt in range(4):
            a, bb = vr(b + 4 * nt, 4), x
            if kv and nt >= 2:
                a, bb = bb, a
            o.append(f'{MF16} {vr(ACC + 4 * nt, 4)}, {a}, {bb}, {c(ACC + 4 * nt)}')
        o.append(f'{MF16} {vr(CSM, 4)}, {vr(b + 16, 4)}, {vr(ON, 4)}, {c(CSM)}')
        return o

    if pre_group:
        pre_group(0)
    for t in reads(0):
        p(t)
    for ks in range(KS):
        nxt = []
        if ks + 1 < KS:
            if (ks + 1) % 2 == 0 and pre_group:
                pre_group((ks + 1) // 2)
            nxt = reads(ks + 1)
        for t in interleave(mfmas(ks), nxt):
            p(t)
    stamp(p, 12)
    p('s_lshl_b32 s65, s8, 6')
    p(f's_add_u32 s65, s65, {misc}')
    p('v_lshl_add_u32 v5, v4, 4, s65')
    p(f'ds_write_b128 v5, {vr(CSM, 4)}')
    p('v_and_b32 v6, 3, v1')
    p('v_cmp_eq_u32 vcc, 1, v6')
    p(f'v_cndmask_b32 v{T}, v{GRM}, v{GRM + 1}, vcc')
    p('v_cmp_eq_u32 vcc, 2, v6')
    p(f'v_cndmask_b32 v{T}, v{T}, v{GRM + 2}, vcc')
    p('v_cmp_eq_u32 vcc, 3, v6')
    p(f'v_cndmask_b32 v{T}, v{T}, v{GRM + 3}, vcc')
    p('v_lshrrev_b32 v6, 2, v3')
    p('v_cmp_eq_u32 vcc, v6, v4')
    p(f'v_cndmask_b32 v{T}, 0, v{T}, vcc')
    p('s_waitcnt lgkmcnt(0)')
    p('s_barrier')
    p(f'v_lshlrev_b32 v5, 4, v4')
    p(f'v_add_u32 v5, {misc}, v5')
    for nt in range(2 if kv else 4):
        p(f'ds_read_b128 {vr(CS + 4 * nt, 4)}, v5 offset:{64 * nt}')
    if kv:
        p('v_lshlrev_b32 v5, 2, v3')
        p(f'v_add_u32 v5, {misc}, v5')
        p(f'ds_read_b32 v{CS + 8}, v5 offset:128')
        p(f'ds_read_b32 v{CS + 9}, v5 offset:192')
    allreduce_g(p, T, T + 1)
    MU, RS = T + 2, T + 3
    var_from(p, SUM, T, MU, T + 1)
    p(f'v_rsq_f32 v{RS}, v{T + 1}')
    if not kv:
        p(f'v_mul_f32 v{RS}, {f32(QSCALE)}, v{RS}')
        for nt in range(4):
            a = ACC + 4 * nt
            for r in range(4):
                p(f'v_fma_f32 v{a + r}, -v{MU}, v{CS + 4 * nt + r}, v{a + r}')
            for r in range(4):
                p(f'v_mul_f32 v{a + r}, v{a + r}, v{RS}')
            p(f'v_cvt_pk_bf16_f32 v{a}, v{a}, v{a + 1}')
            p(f'v_cvt_pk_bf16_f32 v{a + 1}, v{a + 2}, v{a + 3}')
            p(f'buffer_store_dwordx2 {vr(a, 2)}, v{SA + nt}, s[4:7], s64 offen {stfl}')
    else:
        p('s_lshl_b32 s65, s8, 7')
        p(f's_add_u32 s65, s65, {misc + 256}')
        p('v_lshl_add_u32 v5, v3, 2, s65')
        p(f'ds_write_b32 v5, v{MU}')
        p(f'ds_write_b32 v5, v{RS} offset:64')
        p('v_lshl_add_u32 v5, v4, 4, s65')
        p('s_waitcnt lgkmcnt(0)')
        p(f'ds_read_b128 {vr(WF, 4)}, v5')
        p(f'ds_read_b128 {vr(WF + 4, 4)}, v5 offset:64')
        for nt in range(2):
            a = ACC + 4 * nt
            for r in range(4):
                p(f'v_fma_f32 v{a + r}, -v{MU}, v{CS + 4 * nt + r}, v{a + r}')
            for r in range(4):
                p(f'v_mul_f32 v{a + r}, v{a + r}, v{RS}')
            p(f'v_cvt_pk_bf16_f32 v{a}, v{a}, v{a + 1}')
            p(f'v_cvt_pk_bf16_f32 v{a + 1}, v{a + 2}, v{a + 3}')
            if nt == 1:
                p('v_cmp_eq_u32 vcc, 2, v4')
                p(f'v_mov_b32 v6, 0x3f80')
                p(f'v_cndmask_b32 v{a}, v{a}, v{ON}, vcc')
                p(f'v_cndmask_b32 v{a + 1}, v{a + 1}, v6, vcc')
            p(f'buffer_store_dwordx2 {vr(a, 2)}, v{SA + nt}, s[4:7], s64 offen offset:{1024 * nt} {stfl}')
        for nt in (2, 3):
            a = ACC + 4 * nt
            for r in range(4):
                p(f'v_fma_f32 v{a + r}, -v{WF + r}, v{CS + 8 + nt - 2}, v{a + r}')
            for r in range(4):
                p(f'v_mul_f32 v{a + r}, v{a + r}, v{WF + 4 + r}')
            p(f'v_cvt_pk_bf16_f32 v{a}, v{a}, v{a + 1}')
            p(f'v_cvt_pk_bf16_f32 v{a + 1}, v{a + 2}, v{a + 3}')
            if nt == 3:
                p('v_cmp_eq_u32 vcc, 8, v3')
                p(f'v_cndmask_b32 v6, 0, v{ON}, vcc')
                p('v_lshrrev_b32 v7, 2, v3')
                p('v_cmp_eq_u32 vcc, 2, v7')
                p(f'v_cndmask_b32 v{a}, v{a}, v6, vcc')
                p(f'v_cndmask_b32 v{a + 1}, v{a + 1}, v6, vcc')
            p(f'buffer_store_dwordx2 {vr(a, 2)}, v{SA + nt}, s[4:7], s64 offen offset:{2048 + 256 * (nt - 2)} {stfl}')


L1_X = 57344
L1_PREP = 114688
L1_MISC = 131072
L1_LDS = L1_MISC + 1024


def gen_qkv1(p):
    entry(p, 'qkv1_kernel')
    p('s_cmp_ge_u32 s2, 256')
    p('s_cbranch_scc1 q1_end')
    p('s_load_dwordx16 s[68:83], s[0:1], 0')
    p(f's_load_dwordx2 s[84:85], s[0:1], {K_W2}')
    p(f's_load_dwordx2 s[86:87], s[0:1], {K_WS}')
    lane_setup(p)
    p(f's_mov_b32 s51, {LAY[0]["QF"]}')
    p(f's_mov_b32 s52, {LAY[0]["KV"]}')
    p('s_lshr_b32 s53, s10, 3')
    p('s_lshl_b32 s53, s53, 2')
    p('s_lshl_b32 s56, s9, 3')
    p('s_add_u32 s53, s53, s56')
    p('s_add_u32 s53, s53, s8')
    p('s_and_b32 s54, s10, 7')
    qkv_wdma_setup(p)
    p('v_lshrrev_b32 v5, 3, v1')
    p('v_and_b32 v6, 7, v1')
    p('v_xor_b32 v6, v6, v4')
    p('v_xor_b32 v7, 4, v6')
    p('v_mul_u32_u24 v5, 896, v5')
    p('v_lshl_add_u32 v246, v6, 4, v5')
    p('v_lshl_add_u32 v247, v7, 4, v5')
    p(f'v_add_u32 v247, {8 * 896}, v247')
    p('v_lshrrev_b32 v5, 1, v3')
    p('v_xor_b32 v5, v5, v4')
    p('v_lshlrev_b32 v5, 4, v5')
    p('v_lshl_add_u32 v5, v3, 7, v5')
    p('s_lshl_b32 s56, s8, 11')
    p(f's_add_u32 s56, s56, {L1_X}')
    p('v_add_u32 v244, s56, v5')
    p('v_xor_b32 v245, 64, v244')
    p('s_mov_b32 s67, s56')
    p('s_mul_i32 s66, s53, 14336')
    srd(p, 12, 68, S * D * 2)
    srd(p, 32, 70, D * D * 2)
    srd(p, 36, 72, D * DH * 2)
    srd(p, 40, 74, D * DH * 2)
    srd(p, 4, 86, WS_END)

    def xdma(G):
        return ['s_mov_b32 m0, s55', 's_add_u32 s59, s55, 1024',
                f'buffer_load_dwordx4 v246, s[12:15], s50 offen lds ; tag=g{G}',
                's_mov_b32 m0, s59', 's_add_u32 s55, s55, 8192',
                f'buffer_load_dwordx4 v247, s[12:15], s50 offen lds ; tag=g{G}',
                's_add_u32 s50, s50, 128']

    p('s_mov_b32 s55, s67')
    p('s_mov_b32 s50, s66')

    def prep_setup():
        p('s_lshl_b32 s49, s2, 2')
        p('s_add_u32 s49, s49, s8')
        srd(p, 16, 76, D * D * 2)
        p('s_mov_b32 s44, 896')
        p('s_mov_b32 s47, 1')
        p('s_cmp_ge_u32 s49, 112')
        p('s_cbranch_scc1 q1_p1')
        p('s_lshr_b32 s45, s49, 4')
        p('s_lshl_b32 s45, s45, 7')
        p('s_and_b32 s46, s49, 15')
        p(f's_mul_i32 s46, s46, {28 * 896}')
        p('s_add_u32 s45, s45, s46')
        p(f's_add_u32 s46, s45, {16 * 896}')
        p('s_lshl_b32 s48, s49, 12')
        p(f's_add_u32 s48, s48, {WS_WO}')
        p('s_branch q1_pd')
        p.label('q1_p1')
        p('s_sub_u32 s49, s49, 112')
        p('s_cmp_ge_u32 s49, 392')
        p('s_cbranch_scc1 q1_p2')
        srd(p, 16, 80, D * F * 2)
        p('s_mov_b32 s44, 3584')
        p('s_mov_b32 s47, 2')
        p('s_mul_i32 s48, s49, 2341')
        p('s_lshr_b32 s48, s48, 16')
        p('s_mul_i32 s45, s48, 28')
        p('s_sub_u32 s49, s49, s45')
        p(f's_mul_i32 s45, s48, {32 * 3584}')
        p('s_lshl_b32 s46, s49, 7')
        p('s_add_u32 s45, s45, s46')
        p(f's_add_u32 s46, s45, {16 * 3584}')
        p('s_mul_i32 s48, s48, 7168')
        p(f's_add_u32 s48, s48, {WS_W1}')
        p('s_branch q1_pd')
        p.label('q1_p2')
        p('s_sub_u32 s49, s49, 392')
        p('s_mov_b32 s47, 0')
        p('s_mov_b32 s45, 0')
        p('s_mov_b32 s46, 0')
        p('s_mov_b32 s48, 0')
        p('s_cmp_ge_u32 s49, 392')
        p('s_cbranch_scc1 q1_pd')
        srd(p, 16, 84, F * D * 2)
        p('s_mov_b32 s47, 3')
        p('s_mul_i32 s48, s49, 9363')
        p('s_lshr_b32 s48, s48, 16')
        p('s_mul_i32 s45, s48, 7')
        p('s_sub_u32 s49, s49, s45')
        p('s_mul_i32 s45, s48, 147')
        p('s_lshr_b32 s45, s45, 10')
        p('s_mul_i32 s46, s45, 7')
        p('s_sub_u32 s46, s48, s46')
        p('s_mul_i32 s45, s45, 224')
        p('s_lshl_b32 s56, s46, 5')
        p('s_cmp_ge_u32 s46, 3')
        p('s_cselect_b32 s59, 16, 0')
        p('s_add_u32 s56, s56, s59')
        p('s_cmp_eq_u32 s46, 6')
        p('s_cselect_b32 s56, 96, s56')
        p('s_cselect_b32 s59, 112, 16')
        p('s_add_u32 s45, s45, s56')
        p('s_add_u32 s46, s45, s59')
        p('s_mul_i32 s45, s45, 896')
        p('s_mul_i32 s46, s46, 896')
        p('s_lshl_b32 s56, s49, 7')
        p('s_add_u32 s45, s45, s56')
        p('s_add_u32 s46, s46, s56')
        p(f's_mul_i32 s56, s49, {KB * 4096}')
        p('s_lshl_b32 s48, s48, 12')
        p('s_add_u32 s48, s48, s56')
        p(f's_add_u32 s48, s48, {WS_W2}')
        p.label('q1_pd')
        p('v_lshrrev_b32 v5, 3, v1')
        p('v_mul_lo_u32 v5, v5, s44')
        p('v_and_b32 v6, 7, v1')
        p('v_lshlrev_b32 v7, 1, v4')
        p('v_xor_b32 v6, v6, v7')
        p('v_lshl_add_u32 v248, v6, 4, v5')
        p('s_lshl_b32 s44, s44, 3')
        p('v_add_u32 v249, s44, v248')

    def prep_dma():
        p('s_lshl_b32 s56, s8, 12')
        p(f's_add_u32 m0, s56, {L1_PREP}')
        for i in range(4):
            p(f'buffer_load_dwordx4 v{248 + i % 2}, s[16:19], s{45 + i // 2} offen lds ; tag=prep')
            if i < 3:
                p('s_add_u32 m0, m0, 1024')

    def prep_finish(sfx):
        p('s_cmp_eq_u32 s47, 0')
        p(f's_cbranch_scc1 q1_z{sfx}')
        p('v_lshrrev_b32 v5, 2, v1')
        p('v_lshlrev_b32 v6, 7, v5')
        p('v_and_b32 v7, 3, v1')
        p('v_lshl_add_u32 v6, v7, 3, v6')
        p('s_lshl_b32 s56, s8, 12')
        p(f's_add_u32 s56, s56, {L1_PREP}')
        p('v_add_u32 v6, s56, v6')
        p('v_bfe_u32 v5, v5, 1, 2')
        for nt in range(4):
            p(f'v_xor_b32 v7, {nt}, v5')
            p('v_lshl_add_u32 v7, v7, 5, v6')
            p(f'ds_read_b64_tr_b16 {vr(128 + 4 * nt, 2)}, v7')
            p(f'ds_read_b64_tr_b16 {vr(130 + 4 * nt, 2)}, v7 offset:2048')
        p('s_cmp_eq_u32 s47, 2')
        p(f's_cbranch_scc1 q1_s1{sfx}')
        p('s_cmp_eq_u32 s47, 3')
        p(f's_cbranch_scc1 q1_s0{sfx}')
        p('s_mov_b32 exec_lo, 0')
        p('s_mov_b32 exec_hi, 0xffff0000')
        for nt in range(4):
            p(f'v_mov_b32 v{130 + 4 * nt}, 0')
            p(f'v_mov_b32 v{131 + 4 * nt}, 0')
        p('s_mov_b64 exec, -1')
        p.label(f'q1_s0{sfx}')
        for nt in range(4):
            p(f'buffer_store_dwordx4 {vr(128 + 4 * nt, 4)}, v2, s[4:7], s48 offen offset:{1024 * nt}')
        p(f's_branch q1_z{sfx}')
        p.label(f'q1_s1{sfx}')
        for nt in range(4):
            p('s_lshl_b32 s56, s49, 2')
            p(f's_add_u32 s56, s56, {nt}')
            p('s_mul_i32 s57, s56, 147')
            p('s_lshr_b32 s57, s57, 10')
            p(f's_mul_i32 s57, s57, {KS * 7168 - 7168}')
            p('s_lshl_b32 s56, s56, 10')
            p('s_add_u32 s56, s56, s57')
            p('s_add_u32 s56, s56, s48')
            p(f'buffer_store_dwordx4 {vr(128 + 4 * nt, 4)}, v2, s[4:7], s56 offen')
        p.label(f'q1_z{sfx}')
        p('s_cmp_lt_u32 s2, 252')
        p(f's_cbranch_scc1 q1_e{sfx}')
        p('s_sub_u32 s56, s2, 252')
        p('s_lshl_b32 s56, s56, 2')
        p('s_add_u32 s56, s56, s8')
        p('s_lshl_b32 s56, s56, 10')
        p(f's_add_u32 s56, s56, {WS_CNT}')
        for r in range(4):
            p(f'v_mov_b32 v{144 + r}, 0')
        p('buffer_store_dwordx4 v[144:147], v2, s[4:7], s56 offen')
        p.label(f'q1_e{sfx}')
        endpgm(p)

    prep_setup()
    DEPTH = 4
    p('s_cmp_eq_u32 s54, 7')
    p('s_cbranch_scc1 q1_kv')
    for kv in (False, True):
        if kv:
            p.label('q1_kv')
        qkv_wdma_init(p, kv, 0)
        for G in range(DEPTH):
            for t in xdma(G) + qkv_wdma(p, G, kv, 0, f'g{G}'):
                p(t)
        stamp(p, 1)

        def pre(G, kv=kv):
            p(f';;need g{G}')
            p('s_barrier')
            if G == 0:
                stamp(p, 2)
            if G + DEPTH < 7:
                for t in xdma(G + DEPTH) + qkv_wdma(p, G + DEPTH, kv, 0, f'g{G + DEPTH}'):
                    p(t)
            if G + DEPTH == 7:
                prep_dma()
        qkv_core(p, kv, True, 0, L1_MISC, None, pre)
        stamp(p, 13)
        prep_finish('k' if kv else 'q')
    p.label('q1_end')
    p('s_endpgm')
    kernels.append(('qkv1_kernel', 256, 256, 102))


X_W1 = 0
X_MISC = 98 * 1024
X_WO = 100 * 1024
X_LDS = 160 * 1024
SC = 'sc1'


def gen_x(p):
    def consts(L):
        l = LAY[L]
        p(f's_mov_b32 s11, {L}')
        for r, k in ((44, 'QF'), (45, 'KV'), (46, 'OF'), (47, 'X1F'), (48, 'ST1'), (49, 'HF'), (50, 'CNT')):
            p(f's_mov_b32 s{r}, {l[k]}')

    entry(p, 'x2_kernel')
    consts(1)
    p(f's_load_dwordx2 s[88:89], s[0:1], {K_WS}')
    p(f's_load_dwordx2 s[90:91], s[0:1], {K_OUT}')
    p(f's_mov_b32 s16, {WS_X2}')
    p('s_mov_b32 s17, 0')
    p('s_branch x_body')
    entry(p, 'x1_kernel')
    consts(0)
    p(f's_load_dwordx2 s[88:89], s[0:1], {K_AX}')
    p(f's_load_dwordx2 s[90:91], s[0:1], {K_WS}')
    p('s_mov_b32 s16, 0')
    p(f's_mov_b32 s17, {WS_X2}')
    p.label('x_body')
    p('s_cmp_ge_u32 s2, 256')
    p('s_cbranch_scc1 x_end')
    p(f's_load_dwordx2 s[92:93], s[0:1], {K_WS}')
    p('s_load_dwordx8 s[68:75], s[0:1], 0')
    p(f's_load_dwordx2 s[76:77], s[0:1], {K_B1}')
    p(f's_load_dwordx2 s[78:79], s[0:1], {K_B2}')
    lane_setup(p)
    p('s_cmp_ge_u32 s10, 7')
    p('s_cselect_b32 s18, 1, 0')
    p('s_mul_i32 s19, s18, 7')
    p('s_sub_u32 s19, s10, s19')
    p('s_cmp_ge_u32 s19, 7')
    p('s_cselect_b32 s19, 0, s19')
    p('s_lshl_b32 s55, s9, 3')
    p('s_lshl_b32 s56, s18, 2')
    p('s_add_u32 s55, s55, s56')
    srd(p, 4, 92, WS_END)

    Q, O, SB, PB, K0, KVR, T = 8, 40, 104, 136, 152, 160, 224
    RING = 4
    p('s_lshl_b32 s56, s9, 17')
    p('s_lshl_b32 s57, s10, 11')
    p('s_add_u32 s56, s56, s57')
    p('s_add_u32 s56, s56, s44')
    p(f'buffer_load_dwordx4 {vr(K0, 4)}, v2, s[4:7], s45 offen')
    p(f'buffer_load_dwordx4 {vr(K0 + 4, 4)}, v2, s[4:7], s45 offen offset:1024')
    for s in range(4):
        p(f's_add_u32 s57, s8, {s}')
        p('s_and_b32 s57, s57, 3')
        p('s_lshl_b32 s57, s57, 15')
        p('s_add_u32 s57, s57, s56')
        p(f'buffer_load_dwordx4 {vr(Q + 8 * s, 4)}, v2, s[4:7], s57 offen')
        p(f'buffer_load_dwordx4 {vr(Q + 8 * s + 4, 4)}, v2, s[4:7], s57 offen offset:1024')
    p('s_lshl_b32 s58, s8, 16')
    p('s_add_u32 s58, s58, s45')

    def kvld(t, j):
        o = [f'buffer_load_dwordx4 {vr(KVR + 16 * (t % RING) + 4 * j, 4)}, v2, s[4:7], s58 offen offset:{1024 * j}']
        if j == 3:
            o.append('s_add_u32 s58, s58, 4096')
        return o

    for t in range(RING - 1):
        for j in range(4):
            for x in kvld(t, j):
                p(x)
    srd(p, 12, 88, 0)
    p(f's_add_u32 s14, s16, {S * D * 2}')
    srd(p, 20, 90, 0)
    p(f's_add_u32 s22, s17, {S * D * 2}')
    srd(p, 24, 76, F * 2)
    srd(p, 28, 78, D * 2)
    srd(p, 32, 70, D * D * 2)
    srd(p, 36, 72, D * DH * 2)
    srd(p, 40, 74, D * DH * 2)
    p('s_mov_b32 s60, 0xffff0000')
    p('s_mov_b32 s61, 0x07060302')
    p('s_mov_b32 s62, 0')
    p('s_mov_b32 s63, -1')
    p(f's_mul_i32 s64, s19, {KB * 4096}')
    p(f's_mul_i32 s65, s8, {14 * 4096}')
    p('s_add_u32 s64, s64, s65')
    p(f's_add_u32 s64, s64, {WS_W2}')
    p('s_lshl_b32 s65, s19, 16')
    p(f's_add_u32 s65, s65, {WS_WO}')
    p(f's_mul_i32 s66, s10, {KS * 7168}')
    p(f's_add_u32 s66, s66, {WS_W1}')
    p(f's_add_u32 s67, s66, {48 * 1024}')
    p('s_lshl_b32 s59, s8, 10')
    p('v_add_u32 v5, s59, v2')
    p(f's_add_u32 m0, s59, {X_WO}')
    p('v_mul_u32_u24 v6, 896, v3')
    p('v_lshl_add_u32 v6, v4, 3, v6')
    p('s_add_u32 s68, s55, s8')
    p('s_mul_i32 s68, s68, 14336')
    p('s_lshl_b32 s69, s19, 7')
    p('s_add_u32 s68, s68, s69')
    p('s_add_u32 s69, s68, s16')
    p('v_bfe_u32 v7, v1, 4, 1')
    p('v_lshlrev_b32 v7, 14, v7')
    p('v_lshl_add_u32 v7, v3, 4, v7')
    p(f'v_lshrrev_b32 v{T}, 5, v1')
    p(f'v_lshl_add_u32 v7, v{T}, 8, v7')
    stamp(p, 1)
    p('s_mov_b64 exec, s[62:63]')
    for s in range(4):
        p(f'v_mov_b32 v{Q + 8 * s + 6}, 0')
        p(f'v_mov_b32 v{Q + 8 * s + 7}, 0')
    p('s_mov_b64 exec, -1')

    def tile_max_ops(sreg, m, t):
        return [f'v_max3_f32 v{m}, v{sreg}, v{sreg + 1}, v{sreg + 2}',
                f'v_max3_f32 v{t}, v{sreg + 3}, v{sreg + 4}, v{sreg + 5}',
                f'v_max3_f32 v{m}, v{m}, v{sreg + 6}, v{sreg + 7}',
                f'v_max3_f32 v{t}, v{t}, v{sreg + 8}, v{sreg + 9}',
                f'v_max3_f32 v{m}, v{m}, v{sreg + 10}, v{sreg + 11}',
                f'v_max3_f32 v{t}, v{t}, v{sreg + 12}, v{sreg + 13}',
                f'v_max3_f32 v{m}, v{m}, v{sreg + 14}, v{sreg + 15}',
                f'v_max_f32 v{m}, v{m}, v{t}']

    def neg_max(slots):
        for (qb, m, t1, t2) in slots:
            p(f'v_mov_b32 v{t1}, v{m}')
        for (qb, m, t1, t2) in slots:
            p(f'v_permlane32_swap_b32 v{m}, v{t1}')
        for (qb, m, t1, t2) in slots:
            p(f'v_max_f32 v{m}, v{m}, v{t1}')
        for (qb, m, t1, t2) in slots:
            p(f'v_sub_f32 v{m}, 0, v{m}')
            p(f'v_and_b32 v{t1}, s60, v{m}')
            p(f'v_sub_f32 v{m}, v{m}, v{t1}')
            p(f'v_and_b32 v{t2}, s60, v{m}')
            p(f'v_sub_f32 v{m}, v{m}, v{t2}')
        p('s_mov_b64 exec, s[62:63]')
        for (qb, m, t1, t2) in slots:
            p(f'v_perm_b32 v{qb + 6}, v{t2}, v{t1}, s61')
            p(f'v_lshrrev_b32 v{qb + 7}, 16, v{m}')
        p('s_mov_b64 exec, -1')

    for s in range(4):
        d = vr(O + 16 * s, 16)
        p(f'{MF32} {d}, {vr(K0, 4)}, {vr(Q + 8 * s, 4)}, 0')
        p(f'{MF32} {d}, {vr(K0 + 4, 4)}, {vr(Q + 8 * s + 4, 4)}, {d}')
    for s in range(4):
        for x in tile_max_ops(O + 16 * s, T + 4 * s, T + 4 * s + 1):
            p(x)
    neg_max([(Q + 8 * s, T + 4 * s, T + 4 * s + 1, T + 4 * s + 2) for s in range(4)])
    stamp(p, 2)

    def s_mfma(u, i):
        kt, s = (u // 4) % RING, u % 4
        d = vr(SB + 16 * (u % 2), 16)
        c = '0' if i == 0 else d
        return f'{MF32} {d}, {vr(KVR + 16 * kt + 4 * i, 4)}, {vr(Q + 8 * s + 4 * i, 4)}, {c}'

    def pv_mfma(u, i):
        kt, s = (u // 4) % RING, u % 4
        d = vr(O + 16 * s, 16)
        c = '0' if (u < 4 and i == 0) else d
        return f'{MF32} {d}, {vr(KVR + 16 * kt + 8 + 4 * i, 4)}, {vr(PB + 8 * (u % 2) + 4 * i, 4)}, {c}'

    pf = []
    for i in range(15):
        pf.append(['buffer_load_dwordx4 v5, s[4:7], s65 offen lds ; tag=wo', 's_add_u32 m0, m0, 4096',
                   's_add_u32 s65, s65, 4096'])
    for nt in range(4):
        pf.append([f'buffer_load_dwordx4 {ar(224 + 4 * nt, 4)}, v2, s[4:7], s65 offen offset:{1024 * nt}'])
    pf[-1].append(f's_add_u32 m0, s59, {48 * 1024}')
    for nt in range(4):
        pf.append([f'buffer_load_dwordx2 {ar(240 + 2 * nt, 2)}, v6, s[12:15], s69 offen offset:{32 * nt}'])
    for i in range(13):
        pf.append(['buffer_load_dwordx4 v5, s[4:7], s67 offen lds ; tag=w1', 's_add_u32 m0, m0, 4096',
                   's_add_u32 s67, s67, 4096'])
    for i in range(14):
        for nt in range(4):
            e = [f'buffer_load_dwordx4 {ar(16 * i + 4 * nt, 4)}, v2, s[4:7], s64 offen offset:{1024 * nt}']
            if nt == 3:
                e.append('s_add_u32 s64, s64, 4096')
            pf.append(e)
    NU = 64
    p(s_mfma(0, 0))
    p(s_mfma(0, 1))
    pfi = 0
    for u in range(NU):
        sb = SB + 16 * (u % 2)
        pb = PB + 8 * (u % 2)
        m = [s_mfma(u + 1, 0) if u + 1 < NU else None, s_mfma(u + 1, 1) if u + 1 < NU else None,
             pv_mfma(u - 1, 0) if u > 0 else None, pv_mfma(u - 1, 1) if u > 0 else None]
        t, j = u // 4, u % 4
        for q in range(4):
            if m[q]:
                p(m[q])
            if q == 3 and t + RING - 1 < 16 and not (t == 0 and False):
                for x in kvld(t + RING - 1, j):
                    p(x)
            if q in (0, 2) or (q == 3 and t + RING - 1 >= 16):
                want = (len(pf) * (3 * u + q + 1) + 3 * 60 - 1) // (3 * 60)
                if pfi < min(want, len(pf)):
                    for x in pf[pfi]:
                        p(x)
                    pfi += 1
            if q == 1:
                if j == 0 and u > 0 or u == 0:
                    pass
                if j == 0:
                    p(f';;use {vr(KVR + 16 * (t % RING) + 8, 8)}')
                if j == 2 and t + 1 < 16:
                    p(f';;use {vr(KVR + 16 * ((t + 1) % RING), 8)}')
            for jj in range(4):
                p(f'v_exp_f32 v{sb + 4 * q + jj}, v{sb + 4 * q + jj}')
            if q > 0:
                p(f'v_cvt_pk_bf16_f32 v{pb + 2 * q - 2}, v{sb + 4 * q - 4}, v{sb + 4 * q - 3}')
                p(f'v_cvt_pk_bf16_f32 v{pb + 2 * q - 1}, v{sb + 4 * q - 2}, v{sb + 4 * q - 1}')
        p(f'v_cvt_pk_bf16_f32 v{pb + 6}, v{sb + 12}, v{sb + 13}')
        p(f'v_cvt_pk_bf16_f32 v{pb + 7}, v{sb + 14}, v{sb + 15}')
    assert pfi == len(pf), (pfi, len(pf))
    p(pv_mfma(NU - 1, 0))
    p(pv_mfma(NU - 1, 1))
    stamp(p, 3)
    for s in range(1, 4):
        p(f's_add_u32 s56, s8, {s}')
        p('s_and_b32 s56, s56, 3')
        p('s_mul_i32 s56, s56, 12288')
        p(f'v_add_u32 v{T}, s56, v2')
        for j in range(4):
            p(f'ds_write_b128 v{T}, {vr(O + 16 * s + 4 * j, 4)} offset:{(s - 1) * 4096 + j * 1024}')
    p('s_mul_i32 s56, s8, 12288')
    p(f'v_add_u32 v{T}, s56, v2')
    p('s_lshl_b32 s56, s9, 17')
    p('s_lshl_b32 s57, s8, 15')
    p('s_add_u32 s56, s56, s57')
    p('s_lshl_b32 s57, s10, 10')
    p('s_add_u32 s56, s56, s57')
    p('s_add_u32 s56, s56, s46')
    p('s_waitcnt lgkmcnt(0)')
    p('s_barrier')
    for s in range(1, 4):
        for j in range(4):
            p(f'ds_read_b128 {vr(O + 16 * s + 4 * j, 4)}, v{T} offset:{(s - 1) * 4096 + j * 1024}')
    for s in range(1, 4):
        for r in range(16):
            p(f'v_add_f32 v{O + r}, v{O + r}, v{O + 16 * s + r}')
    p(f'v_add_f32 v{T}, |v{O}|, |v{O + 1}|')
    p(f'v_add_f32 v{T + 1}, |v{O + 2}|, |v{O + 3}|')
    for r in range(4, 16):
        p(f'v_add_f32 v{T + r % 2}, v{T + r % 2}, |v{O + r}|')
    p(f'v_add_f32 v{T}, v{T}, v{T + 1}')
    p(f'v_mov_b32 v{T + 1}, 0x7f800000')
    p(f'v_cmp_lt_f32 vcc, v{T}, v{T + 1}')
    p('s_cmp_eq_u64 vcc, -1')
    p('s_cbranch_scc0 attn_slow')
    p.label('attn_fin')
    p(f'v_mov_b32 v{T}, v{O + 12}')
    p(f'v_mov_b32 v{T + 1}, v{O + 12}')
    p(f'v_permlane32_swap_b32 v{T}, v{T + 1}')
    p(f'v_rcp_f32 v{T}, v{T + 1}')
    for r in range(16):
        p(f'v_mul_f32 v{O + r}, v{O + r}, v{T}')
    for rq in range(4):
        o = O + 16 + 4 * (rq % 2) + 2 * (rq // 2)
        p(f'v_cvt_pk_bf16_f32 v{o}, v{O + 4 * rq}, v{O + 4 * rq + 1}')
        p(f'v_cvt_pk_bf16_f32 v{o + 1}, v{O + 4 * rq + 2}, v{O + 4 * rq + 3}')
    p(f'buffer_store_dwordx4 {vr(O + 16, 4)}, v7, s[4:7], s56 offen {SC}')
    p(f'buffer_store_dwordx4 {vr(O + 20, 4)}, v7, s[4:7], s56 offen offset:512 {SC}')
    stamp(p, 4)

    def sync(k, nprod, helpers=None):
        p('s_waitcnt vmcnt(0)')
        p('s_barrier')
        p('s_cmp_lg_u32 s8, 0')
        p(f's_cbranch_scc1 sy{k}_h')
        p(f's_add_u32 s56, s9, {16 * k}')
        p('s_lshl_b32 s56, s56, 7')
        p('s_add_u32 s56, s56, s50')
        p('v_mov_b32 v252, 0')
        p('v_mov_b32 v253, 1')
        p('s_mov_b64 exec, 1')
        if nprod < 16:
            p(f's_cmp_ge_u32 s10, {nprod}')
            p(f's_cbranch_scc1 sy{k}_n')
        p('buffer_atomic_add v253, v252, s[4:7], s56 offen sc1')
        p.label(f'sy{k}_n')
        p('s_mov_b32 s57, 200000')
        p.label(f'sy{k}_p')
        p('buffer_load_dword v253, v252, s[4:7], s56 offen sc1')
        p('s_sub_u32 s57, s57, 1')
        p('s_waitcnt vmcnt(0)')
        p('v_readfirstlane_b32 s58, v253')
        p('s_cmp_eq_u32 s57, 0')
        p(f's_cbranch_scc1 sy{k}_q')
        p(f's_cmp_lt_u32 s58, {nprod}')
        p(f's_cbranch_scc1 sy{k}_p')
        p.label(f'sy{k}_q')
        p('s_mov_b64 exec, -1')
        p(f's_branch sy{k}_e')
        p.label(f'sy{k}_h')
        if helpers:
            helpers()
        p.label(f'sy{k}_e')
        p('s_barrier')

    def h_w1():
        p('s_sub_u32 s56, s8, 1')
        p('s_lshl_b32 s56, s56, 14')
        p('s_mov_b32 m0, s56')
        p('s_add_u32 s56, s56, s66')
        for i in range(4):
            for j in range(4):
                p(f'buffer_load_dwordx4 v2, s[4:7], s56 offen offset:{1024 * j} lds')
            if i < 3:
                p('s_add_u32 m0, m0, 4096')
                p('s_add_u32 s56, s56, 4096')

    sync(0, 16, h_w1)
    stamp(p, 5)

    X1K = 244
    p('s_cmp_ge_u32 s10, 14')
    p('s_cbranch_scc1 w_skip')
    XB, ACC, WF = 8, 72, 88
    p('s_add_u32 s56, s55, s8')
    p('s_lshl_b32 s57, s56, 14')
    p('s_add_u32 s57, s57, s46')
    for ks in range(16):
        if ks and ks % 4 == 0:
            p('s_add_u32 s57, s57, 4096')
        p(f'buffer_load_dwordx4 {vr(XB + 4 * ks, 4)}, v2, s[4:7], s57 offen offset:{1024 * (ks % 4)} {SC}')
    p(f'v_add_u32 v5, {X_WO}, v2')
    NBW = 3

    def wrd(ks):
        return [f'ds_read_b128 {vr(WF + 16 * (ks % NBW) + 4 * nt, 4)}, v5 offset:{(ks * 4 + nt) * 1024}' for nt in range(4)]
    for x in wrd(0) + wrd(1):
        p(x)
    p('s_mov_b32 s60, 0xffff0000')
    for j in range(8):
        p(f'v_accvgpr_read_b32 v{140 + j}, a{240 + j}')
    for j in range(8):
        p(f'v_lshlrev_b32 v{ACC + 2 * j}, 16, v{140 + j}')
        p(f'v_and_b32 v{ACC + 2 * j + 1}, s60, v{140 + j}')
    p('s_mul_i32 s57, s56, 14336')
    p('s_lshl_b32 s58, s19, 11')
    p('s_add_u32 s57, s57, s58')
    p('s_add_u32 s57, s57, s47')
    p('s_lshl_b32 s58, s56, 10')
    p('s_lshl_b32 s59, s19, 7')
    p('s_add_u32 s58, s58, s59')
    p('s_add_u32 s58, s58, s48')
    p('v_lshlrev_b32 v6, 3, v3')
    for ks in range(16):
        mf = []
        for nt in range(4):
            a = vr(WF + 16 * (ks % NBW) + 4 * nt, 4) if ks < 15 else ar(224 + 4 * nt, 4)
            d = vr(ACC + 4 * nt, 4)
            mf.append(f'{MF16} {d}, {a}, {vr(XB + 4 * ks, 4)}, {d}')
        for x in interleave(mf, wrd(ks + 2) if ks + 2 < 15 else []):
            p(x)
    stamp(p, 6)
    for j in range(8):
        p(f'v_cvt_pk_bf16_f32 v{X1K + j}, v{ACC + 2 * j}, v{ACC + 2 * j + 1}')
    p(f'buffer_store_dwordx4 {vr(X1K, 4)}, v2, s[4:7], s57 offen {SC}')
    p(f'buffer_store_dwordx4 {vr(X1K + 4, 4)}, v2, s[4:7], s57 offen offset:1024 {SC}')
    for j in range(8):
        p(f'v_lshlrev_b32 v{ACC + 2 * j}, 16, v{X1K + j}')
        p(f'v_and_b32 v{ACC + 2 * j + 1}, s60, v{X1K + j}')
    p(f'v_add_f32 v8, v{ACC}, v{ACC + 1}')
    p(f'v_mul_f32 v9, v{ACC}, v{ACC}')
    p(f'v_add_f32 v10, v{ACC + 2}, v{ACC + 3}')
    p(f'v_mul_f32 v11, v{ACC + 1}, v{ACC + 1}')
    for r in range(2, 16):
        if r >= 4:
            p(f'v_add_f32 v{8 + 2 * (r % 2)}, v{8 + 2 * (r % 2)}, v{ACC + r}')
        p(f'v_fmac_f32 v{9 + 2 * (r % 2)}, v{ACC + r}, v{ACC + r}')
    p('v_add_f32 v8, v8, v10')
    p('v_add_f32 v9, v9, v11')
    allreduce_g2(p, 8, 10, 9, 11)
    p('s_mov_b64 exec, 0xffff')
    p(f'buffer_store_dwordx2 v[8:9], v6, s[4:7], s58 offen {SC}')
    p('s_mov_b64 exec, -1')
    p.label('w_skip')

    def h_cs():
        for r in range(4):
            p(f'v_mov_b32 v{8 + r}, {ONES}')
        p('s_sub_u32 s56, s8, 1')
        p('s_lshl_b32 s57, s56, 10')
        p('v_add_u32 v5, s57, v2')
        p('v_add_u32 v6, 0xc400, v5')
        NBC = 4

        def rd(ks):
            va, k2 = ('v5', ks) if ks < 7 else ('v6', ks - 7)
            return [f'ds_read_b128 {vr(24 + 12 * (ks % NBC) + 4 * i, 4)}, {va} offset:{k2 * 7168 + i * 3072}' for i in range(3)]
        for ks in range(NBC - 1):
            for x in rd(ks):
                p(x)
        for ks in range(KS):
            mf = []
            for i in range(3):
                d = vr(12 + 4 * i, 4)
                mf.append(f'{MF16} {d}, {vr(24 + 12 * (ks % NBC) + 4 * i, 4)}, v[8:11], {"0" if ks == 0 else d}')
            for x in interleave(mf, rd(ks + NBC - 1) if ks + NBC - 1 < KS else []):
                p(x)
        p('s_lshl_b32 s57, s56, 6')
        p(f's_add_u32 s57, s57, {X_MISC}')
        p('v_lshl_add_u32 v5, v4, 4, s57')
        for i in range(3):
            p(f'ds_write_b128 v5, {vr(12 + 4 * i, 4)} offset:{192 * i}')
        p('s_waitcnt lgkmcnt(0)')

    BP = 226
    p('s_mul_i32 s59, s10, 224')
    p('v_lshlrev_b32 v7, 3, v4')
    for nt in range(7):
        p(f'buffer_load_dwordx2 {vr(BP + 2 * nt, 2)}, v7, s[24:27], s59 offen offset:{32 * nt}')
    sync(1, 14, h_cs)
    stamp(p, 7)

    XB, ACC, WF = 8, 120, 176
    TM = 208
    KC = 240
    p('s_lshl_b32 s56, s9, 3')
    p('s_lshl_b32 s57, s8, 1')
    p('s_add_u32 s56, s56, s57')
    p('s_lshl_b32 s57, s56, 10')
    p('s_add_u32 s57, s57, s48')
    p('v_lshlrev_b32 v5, 3, v3')
    p('v_lshl_add_u32 v5, v4, 8, v5')
    for m in range(2):
        p(f'buffer_load_dwordx2 {vr(TM + 4 * m, 2)}, v5, s[4:7], s57 offen offset:{1024 * m} {SC}')
        p(f'buffer_load_dwordx2 {vr(TM + 4 * m + 2, 2)}, v5, s[4:7], s57 offen offset:{1024 * m + 128} {SC}')
    p('s_mul_i32 s57, s56, 14336')
    p('s_add_u32 s57, s57, s47')
    p('s_add_u32 s58, s57, 14336')

    def xld(ks):
        o = []
        if ks and ks % 4 == 0:
            o += ['s_add_u32 s57, s57, 4096', 's_add_u32 s58, s58, 4096']
        o.append(f'buffer_load_dwordx4 {vr(XB + 4 * ks, 4)}, v2, s[4:7], s57 offen offset:{1024 * (ks % 4)} {SC}')
        o.append(f'buffer_load_dwordx4 {vr(XB + 56 + 4 * ks, 4)}, v2, s[4:7], s58 offen offset:{1024 * (ks % 4)} {SC}')
        return o
    XD = 7
    for ks in range(XD):
        for x in xld(ks):
            p(x)
    p('v_lshlrev_b32 v5, 4, v4')
    p(f'v_add_u32 v5, {X_MISC}, v5')
    for nt in range(7):
        p(f'ds_read_b128 {vr(ACC + 4 * nt, 4)}, v5 offset:{64 * nt}')
    p('v_add_u32 v6, 0xc400, v2')
    p('v_cmp_eq_u32 vcc, 3, v4')
    for m in range(2):
        b = TM + 4 * m
        p(f'v_cndmask_b32 v{b + 2}, v{b + 2}, 0, vcc')
        p(f'v_cndmask_b32 v{b + 3}, v{b + 3}, 0, vcc')
        p(f'v_add_f32 v{b}, v{b}, v{b + 2}')
        p(f'v_add_f32 v{b + 1}, v{b + 1}, v{b + 3}')
        allreduce_g2(p, b, b + 2, b + 1, b + 3)
        var_from(p, b, b + 1, b + 2, b + 3)
        p(f'v_rsq_f32 v{b}, v{b + 3}')
        p(f'v_mul_f32 v{252 + m}, v{b + 3}, v{b}')
    C0 = -2.0 * math.sqrt(2.0 / math.pi) * math.log2(math.e)
    for m in range(2):
        b = TM + 4 * m
        p(f'v_mul_f32 v{KC + 2 * m}, {f32(C0)}, v{b}')
        p(f'v_mul_f32 v{b + 1}, v{b}, v{b}')
        p(f'v_mul_f32 v{b + 1}, {f32(0.044715)}, v{b + 1}')
        p(f'v_mul_f32 v{KC + 2 * m + 1}, v{b + 1}, v{KC + 2 * m}')
    p('s_mov_b32 s60, 0xffff0000')
    for j in range(14):
        for h in range(2):
            i = 2 * j + h
            t = TM + 8 + (i % 4)
            if h == 0:
                p(f'v_lshlrev_b32 v{t}, 16, v{BP + j}')
            else:
                p(f'v_and_b32 v{t}, s60, v{BP + j}')
            p(f'v_mul_f32 v{ACC + 28 + i}, v{TM + 6}, v{ACC + i}')
            p(f'v_mul_f32 v{ACC + i}, v{TM + 2}, v{ACC + i}')
            p(f'v_fma_f32 v{ACC + 28 + i}, v{t}, v253, -v{ACC + 28 + i}')
            p(f'v_fma_f32 v{ACC + i}, v{t}, v252, -v{ACC + i}')
    p('s_lshr_b32 s59, s10, 1')
    p('s_mul_i32 s59, s59, 7168')
    p(f's_mul_i32 s61, s56, {KB * 1024}')
    p('s_add_u32 s59, s59, s61')
    p('s_add_u32 s59, s59, s49')
    p('s_and_b32 s61, s10, 1')
    p('s_mul_i32 s62, s61, 3072')
    p('s_add_u32 s62, s62, s59')
    p(f's_add_u32 s63, s62, {KB * 1024}')
    p('s_lshl_b32 s61, s61, 3')
    p('s_add_u32 s61, s61, s59')
    p('s_add_u32 s64, s61, 6144')
    p(f's_add_u32 s65, s64, {KB * 1024}')

    def f1_stream(tiles, with_x):
        n = len(tiles)
        nb = 32 // (4 * n) if n > 1 else 4
        nb = min(nb, 4)

        def rd(ks):
            va, k2 = ('v2', ks) if ks < 7 else ('v6', ks - 7)
            return [f'ds_read_b128 {vr(WF + 4 * n * (ks % nb) + 4 * i, 4)}, {va} offset:{k2 * 7168 + t * 1024}'
                    for i, t in enumerate(tiles)]
        head = []
        for ks in range(nb - 1):
            head += rd(ks)
        out = []
        for ks in range(KS):
            mf = []
            for i, t in enumerate(tiles):
                for m in range(2):
                    d = vr(ACC + 28 * m + 4 * t, 4)
                    mf.append(f'{MF16} {d}, {vr(WF + 4 * n * (ks % nb) + 4 * i, 4)}, {vr(XB + 56 * m + 4 * ks, 4)}, {d}')
            sec = rd(ks + nb - 1) if ks + nb - 1 < KS else []
            if with_x and ks + XD < KS:
                sec = sec + xld(ks + XD)
            out += interleave(mf, sec)
        return head, out

    def gelu(tiles):
        o = []
        for m in range(2):
            k0, k1, sg = KC + 2 * m, KC + 2 * m + 1, 252 + m
            for t in tiles:
                a = ACC + 28 * m + 4 * t
                tt = TM + 4 * ((t + m) % 4)
                for r in range(4):
                    o.append(f'v_mul_f32 v{tt + r}, v{a + r}, v{a + r}')
                for r in range(4):
                    o.append(f'v_fma_f32 v{tt + r}, v{tt + r}, v{k1}, v{k0}')
                for r in range(4):
                    o.append(f'v_mul_f32 v{tt + r}, v{tt + r}, v{a + r}')
                for r in range(4):
                    o.append(f'v_exp_f32 v{tt + r}, v{tt + r}')
                for r in range(4):
                    o.append(f'v_fma_f32 v{tt + r}, v{tt + r}, v{sg}, v{sg}')
                for r in range(4):
                    o.append(f'v_rcp_f32 v{tt + r}, v{tt + r}')
                for r in range(4):
                    o.append(f'v_mul_f32 v{a + r}, v{a + r}, v{tt + r}')
                q = ACC + 28 * m + 8 * (t // 2) + 2 * (t % 2)
                o.append(f'v_cvt_pk_bf16_f32 v{q}, v{a}, v{a + 1}')
                o.append(f'v_cvt_pk_bf16_f32 v{q + 1}, v{a + 2}, v{a + 3}')
                if t % 2 == 1:
                    o.append(f'buffer_store_dwordx4 {vr(q - 2, 4)}, v2, s[4:7], s{62 + m} offen offset:{1024 * (t // 2)} {SC}')
                if t == 6:
                    o.append(f'buffer_store_dwordx2 {vr(q, 2)}, v2, s[4:7], s{64 + m} offen {SC}')
        return o

    h0, b0 = f1_stream([0, 1, 2, 3], True)
    for x in h0 + b0:
        p(x)
    stamp(p, 8)
    h1, b1 = f1_stream([4, 5], False)
    for x in h1:
        p(x)
    p('s_cmp_eq_u32 s11, 1')
    p('s_cbranch_scc1 f1_nq')
    p('s_and_b32 s54, s10, 7')
    p('s_mov_b32 s66, s62')
    p('s_mov_b32 s67, s63')
    p('v_mov_b32 v224, v6')
    p('v_mov_b32 v226, v240')
    p('v_mov_b32 v227, v241')
    p('v_mov_b32 v228, v242')
    p('v_mov_b32 v229, v243')
    qkv_wdma_setup(p)
    p('s_cmp_eq_u32 s54, 7')
    p('s_cbranch_scc1 f1_kv')
    qkv_wdma_init(p, False, X_WO)
    for G in range(7):
        for x in qkv_wdma(p, G, False, X_WO, 'wq'):
            p(x)
    p('s_branch f1_q2')
    p.label('f1_kv')
    qkv_wdma_init(p, True, X_WO)
    for G in range(7):
        for x in qkv_wdma(p, G, True, X_WO, 'wq'):
            p(x)
    p.label('f1_q2')
    p('s_mov_b32 s62, s66')
    p('s_mov_b32 s63, s67')
    p('v_mov_b32 v6, v224')
    p('v_mov_b32 v240, v226')
    p('v_mov_b32 v241, v227')
    p('v_mov_b32 v242, v228')
    p('v_mov_b32 v243, v229')
    p.label('f1_nq')
    for x in interleave(b1, gelu([0, 1, 2, 3])):
        p(x)
    h2, b2 = f1_stream([6], False)
    for x in h2:
        p(x)
    for x in interleave(b2, gelu([4, 5]), start=2):
        p(x)
    stamp(p, 9)
    for x in gelu([6]):
        p(x)
    p('s_lshl_b32 s59, s19, 7')
    p('v_lshlrev_b32 v7, 3, v4')
    for nt in range(4):
        p(f'buffer_load_dwordx2 {vr(236 + 2 * nt, 2)}, v7, s[28:31], s59 offen offset:{32 * nt}')
    sync(2, 16)
    stamp(p, 10)

    p('s_cmp_ge_u32 s10, 14')
    p('s_cbranch_scc1 f2_skip')
    ACC, HR = 8, 72
    RB = 10
    HD = 5
    p('s_mul_i32 s56, s8, 14336')
    p(f's_mul_i32 s57, s55, {KB * 1024}')
    p('s_add_u32 s56, s56, s57')
    p('s_add_u32 s56, s56, s49')
    for s in range(4):
        p(f's_add_u32 s57, s8, {s}')
        p('s_and_b32 s57, s57, 3')
        p(f's_mul_i32 s57, s57, {KB * 1024}')
        p(f'v_add_u32 v{232 + s}, s57, v2')

    def hld(i):
        o = []
        if i and i % 4 == 0:
            o.append('s_add_u32 s56, s56, 4096')
        for s in range(4):
            o.append(f'buffer_load_dwordx4 {vr(HR + 16 * (i % RB) + 4 * s, 4)}, v{232 + s}, s[4:7], s56 offen offset:{1024 * (i % 4)} {SC}')
        return o
    for i in range(HD):
        for x in hld(i):
            p(x)
    p('s_mov_b32 s60, 0xffff0000')
    for j in range(8):
        p(f'v_lshlrev_b32 v{ACC + 2 * j}, 16, v{X1K + j}')
        p(f'v_and_b32 v{ACC + 2 * j + 1}, s60, v{X1K + j}')
        p(f'v_lshlrev_b32 v{ACC + 16 + 2 * j}, 16, v{236 + j}')
        p(f'v_and_b32 v{ACC + 17 + 2 * j}, s60, v{236 + j}')
    for r in range(16):
        p(f'v_add_f32 v{ACC + r}, v{ACC + r}, v{ACC + 16 + r}')
    for i in range(14):
        mf = []
        for s in range(4):
            for nt in range(4):
                d = vr(ACC + 16 * s + 4 * nt, 4)
                c = '0' if (i == 0 and s > 0) else d
                mf.append(f'{MF16} {d}, {ar(16 * i + 4 * nt, 4)}, {vr(HR + 16 * (i % RB) + 4 * s, 4)}, {c}')
        for x in interleave(mf, hld(i + HD) if i + HD < 14 else []):
            p(x)
    stamp(p, 11)
    for s in range(1, 4):
        p(f's_add_u32 s56, s8, {s}')
        p('s_and_b32 s56, s56, 3')
        p('s_mul_i32 s56, s56, 12288')
        p('v_add_u32 v5, s56, v2')
        for j in range(4):
            p(f'ds_write_b128 v5, {vr(ACC + 16 * s + 4 * j, 4)} offset:{(s - 1) * 4096 + j * 1024}')
    p('s_mul_i32 s56, s8, 12288')
    p('v_add_u32 v5, s56, v2')
    p('v_lshrrev_b32 v6, 1, v4')
    p('v_and_b32 v7, 1, v4')
    p('v_lshl_or_b32 v6, v7, 1, v6')
    p('v_mul_u32_u24 v7, 896, v3')
    p('v_lshl_add_u32 v7, v6, 4, v7')
    p('v_lshlrev_b32 v6, 8, v6')
    p('v_lshl_add_u32 v6, v3, 4, v6')
    p('s_add_u32 s57, s68, s17')
    p('s_add_u32 s58, s55, s8')
    p('s_mul_i32 s58, s58, 14336')
    p('s_lshl_b32 s59, s19, 11')
    p('s_add_u32 s58, s58, s59')
    p(f's_add_u32 s58, s58, {WS_X2N}')
    p('s_waitcnt lgkmcnt(0)')
    p('s_barrier')
    for s in range(1, 4):
        for j in range(4):
            p(f'ds_read_b128 {vr(ACC + 16 * s + 4 * j, 4)}, v5 offset:{(s - 1) * 4096 + j * 1024}')
    for s in range(1, 4):
        for r in range(16):
            p(f'v_add_f32 v{ACC + r}, v{ACC + r}, v{ACC + 16 * s + r}')
    for j in range(8):
        p(f'v_cvt_pk_bf16_f32 v{72 + j}, v{ACC + 2 * j}, v{ACC + 2 * j + 1}')
    for pp in range(2):
        p(f'v_permlane16_swap_b32 v{72 + 4 * pp}, v{74 + 4 * pp}')
        p(f'v_permlane16_swap_b32 v{73 + 4 * pp}, v{75 + 4 * pp}')
    p('s_cmp_eq_u32 s11, 1')
    p('s_cbranch_scc1 f2_out')
    for pp in range(2):
        p(f'buffer_store_dwordx4 {vr(72 + 4 * pp, 4)}, v6, s[4:7], s58 offen offset:{1024 * pp} {SC}')
    p.label('f2_out')
    for pp in range(2):
        p(f'buffer_store_dwordx4 {vr(72 + 4 * pp, 4)}, v7, s[20:23], s57 offen offset:{64 * pp}')
    p.label('f2_skip')
    p('s_cmp_eq_u32 s11, 1')
    p('s_cbranch_scc1 x_fin')
    sync(3, 14)
    stamp(p, 14)

    p(f's_mov_b32 s51, {LAY[1]["QF"]}')
    p(f's_mov_b32 s52, {LAY[1]["KV"]}')
    p('s_lshr_b32 s53, s10, 3')
    p('s_lshl_b32 s53, s53, 2')
    p('s_lshl_b32 s56, s9, 3')
    p('s_add_u32 s53, s53, s56')
    p('s_add_u32 s53, s53, s8')
    p('s_and_b32 s54, s10, 7')
    XR = 128
    p('s_mul_i32 s56, s53, 14336')
    p(f's_add_u32 s56, s56, {WS_X2N}')
    for ks in range(KS):
        if ks and ks % 4 == 0:
            p('s_add_u32 s56, s56, 4096')
        p(f'buffer_load_dwordx4 {vr(XR + 4 * ks, 4)}, v2, s[4:7], s56 offen offset:{1024 * (ks % 4)} {SC}')
    p('s_cmp_eq_u32 s54, 7')
    p('s_cbranch_scc1 xq_kv')
    qkv_core(p, False, False, X_WO, X_MISC, XR)
    p('s_branch x_fin')
    p.label('xq_kv')
    qkv_core(p, True, False, X_WO, X_MISC, XR)
    p.label('x_fin')
    endpgm(p)
    p.label('x_end')
    p('s_endpgm')

    p.label('attn_slow')
    p('s_mov_b64 exec, s[62:63]')
    p(f'v_mov_b32 v{Q + 6}, 0')
    p(f'v_mov_b32 v{Q + 7}, 0')
    p('s_mov_b64 exec, -1')
    p(f'v_mov_b32 v{T + 8}, 0xff800000')
    p('s_mov_b32 s58, s45')
    p('s_mov_b32 s57, 64')
    p.label('attn_slow1')
    p(f'buffer_load_dwordx4 {vr(KVR, 4)}, v2, s[4:7], s58 offen')
    p(f'buffer_load_dwordx4 {vr(KVR + 4, 4)}, v2, s[4:7], s58 offen offset:1024')
    p('s_add_u32 s58, s58, 4096')
    p(f'{MF32} {vr(SB, 16)}, {vr(KVR, 4)}, {vr(Q, 4)}, 0')
    p(f'{MF32} {vr(SB, 16)}, {vr(KVR + 4, 4)}, {vr(Q + 4, 4)}, {vr(SB, 16)}')
    for x in tile_max_ops(SB, T, T + 1):
        p(x)
    p(f'v_max_f32 v{T + 8}, v{T + 8}, v{T}')
    p('s_sub_u32 s57, s57, 1')
    p('s_cmp_lg_u32 s57, 0')
    p('s_cbranch_scc1 attn_slow1')
    neg_max([(Q, T + 8, T + 1, T + 2)])
    for r in range(16):
        p(f'v_mov_b32 v{O + r}, 0')
    p('s_mov_b32 s58, s45')
    p('s_mov_b32 s57, 64')
    p.label('attn_slow2')
    for j in range(4):
        for x in kvld(0, j):
            p(x)
    p(f'{MF32} {vr(SB, 16)}, {vr(KVR, 4)}, {vr(Q, 4)}, 0')
    p(f'{MF32} {vr(SB, 16)}, {vr(KVR + 4, 4)}, {vr(Q + 4, 4)}, {vr(SB, 16)}')
    for r in range(16):
        p(f'v_exp_f32 v{SB + r}, v{SB + r}')
    for r in range(8):
        p(f'v_cvt_pk_bf16_f32 v{PB + r}, v{SB + 2 * r}, v{SB + 2 * r + 1}')
    p(f'{MF32} {vr(O, 16)}, {vr(KVR + 8, 4)}, {vr(PB, 4)}, {vr(O, 16)}')
    p(f'{MF32} {vr(O, 16)}, {vr(KVR + 12, 4)}, {vr(PB + 4, 4)}, {vr(O, 16)}')
    p('s_sub_u32 s57, s57, 1')
    p('s_cmp_lg_u32 s57, 0')
    p('s_cbranch_scc1 attn_slow2')
    p('s_branch attn_fin')
    for k in ('x1_kernel', 'x2_kernel'):
        kernels.append((k, 512, 256, 102))


def main():
    p = Prog()
    gen_qkv1(p)
    gen_x(p)
    p.finish()
    launches = [('qkv1_kernel', 256, 256, L1_LDS), ('x1_kernel', 256, 256, X_LDS), ('x2_kernel', 256, 256, X_LDS)]
    out = ['; generated by gen/gen2.py (hand-written generator); see that script for the data layouts']
    for (k, g, b, l) in launches:
        out.append(f'; @launch kernel={k} grid=({g},1,1) block=({b},1,1) lds={l}')
    out.append('.amdgcn_target "amdgcn-amd-amdhsa--gfx950"')
    out.append('.text')
    out.append(p.text())
    out.append('.section .rodata,"a"')
    for (k, nv, acc, ns) in kernels:
        out.append('.p2align 6')
        out.append(f'.amdhsa_kernel {k}')
        out.append(f'  .amdhsa_next_free_vgpr {nv}')
        out.append(f'  .amdhsa_next_free_sgpr {ns}')
        out.append(f'  .amdhsa_accum_offset {acc}')
        out.append('  .amdhsa_group_segment_fixed_size 0')
        out.append('  .amdhsa_kernarg_size 104')
        out.append('  .amdhsa_user_sgpr_count 2')
        out.append('  .amdhsa_user_sgpr_kernarg_segment_ptr 1')
        out.append('  .amdhsa_system_sgpr_workgroup_id_x 1')
        out.append('.end_amdhsa_kernel')
    dst = sys.argv[1] if len(sys.argv) > 1 else f'cdna_kernels/{NAME}.s'
    open(dst, 'w').write('\n'.join(out) + '\n')
    json.dump(dict(V=2, WO=WS_WO, W1=WS_W1, W2=WS_W2, X2=WS_X2, X2N=WS_X2N, LAY=LAY, END=WS_END),
              open('layout.json', 'w'))
    print('wrote', dst, 'ws bytes', WS_END, 'max regs', p.max_regs(), 'instrs', len(p.ins))


if __name__ == '__main__':
    main()
```

```python
import json
import math
import os
import struct
import sys
from asmlib import Prog, vr, sr, ar, interleave

NAME = 'interleave_layers__grouped_kv_mqa__dense_activation_gelu__prompt'
S, D, H, DH, F = 2048, 448, 16, 28, 1792
KS = 14
KB = 56
STAMP = int(os.environ.get('STAMP', '0'))
WS_STAMP = 200 << 20
CODEPF = int(os.environ.get('CODEPF', '1'))


def f32(x):
    return '0x%08x' % struct.unpack('<I', struct.pack('<f', x))[0]


_off = 0


def alloc(n):
    global _off
    o = _off
    _off += (n + 4095) // 4096 * 4096
    return o


ACT = 128 * KS * 1024
WS_WO = alloc(7 * 16 * 4096)
WS_W1 = alloc(16 * KS * 7168 + 4096)
WS_W2 = alloc(7 * KB * 4096)
WS_X2 = alloc(ACT)
WS_X2N = alloc(ACT)
WS_CNT = alloc(2 * 4 * 16 * 128)
LAY = []
for L in range(2):
    LAY.append(dict(QF=alloc(64 * 16 * 2048), KV=alloc(64 * 4096), OF=alloc(128 * 16 * 1024), X1F=alloc(ACT),
                    ST1=alloc(128 * 1024), HF=alloc(128 * KB * 1024), CNT=WS_CNT + L * 8192))
WS_END = _off

K_AX, K_WQ, K_WK, K_WV, K_WO, K_BX, K_W1, K_B1, K_W2, K_B2, K_OUT, K_DBG, K_WS = [8 * i for i in range(13)]
QSCALE = DH ** -0.5 * math.log2(math.e)
MF16 = 'v_mfma_f32_16x16x32_bf16'
MF32 = 'v_mfma_f32_32x32x16_bf16'
ONES = '0x3f803f80'

kernels = []
LAUNCH_ID = {'qkv1_kernel': 0, 'x1_kernel': 1, 'x2_kernel': 2}
NST = 16


def stamp(p, i):
    if STAMP:
        p('s_memrealtime s[100:101]')
        p('s_waitcnt lgkmcnt(0)')
        p(f'v_writelane_b32 v255, s100, {i}')


def endpgm(p):
    if STAMP:
        p('s_waitcnt vmcnt(0)')
        stamp(p, 15)
        p(f's_load_dwordx2 s[96:97], s[0:1], {K_WS}')
        p('s_lshl_b32 s98, s2, 2')
        p('s_add_u32 s98, s98, s8')
        p('s_lshl_b32 s98, s98, 6')
        p('s_lshl_b32 s99, s3, 17')
        p('s_add_u32 s98, s98, s99')
        p(f's_add_u32 s98, s98, {WS_STAMP}')
        p('s_mov_b64 exec, -1')
        p('v_and_b32 v254, 63, v0')
        p('v_lshl_add_u32 v254, v254, 2, s98')
        p('s_mov_b64 exec, 0xffff')
        p('global_store_dword v254, v255, s[96:97]')
    p('s_endpgm')


def srd(p, base, ptr, nbytes):
    p(f's_mov_b32 s{base}, s{ptr}')
    p(f's_and_b32 s{base + 1}, s{ptr + 1}, 0xffff')
    p(f's_mov_b32 s{base + 2}, {nbytes}')
    p(f's_mov_b32 s{base + 3}, 0x20000')


def entry(p, label):
    p('.p2align 8')
    p(f'.globl {label}')
    p(f'.type {label},@function')
    p.label(label)
    if STAMP:
        p(f's_mov_b32 s3, {LAUNCH_ID[label]}')
        p('v_mov_b32 v255, 0')
        stamp(p, 0)


def lane_setup(p):
    p('v_lshrrev_b32 v1, 6, v0')
    p('v_readfirstlane_b32 s8, v1')
    p('v_and_b32 v1, 63, v0')
    p('v_lshlrev_b32 v2, 4, v1')
    p('v_and_b32 v3, 15, v1')
    p('v_lshrrev_b32 v4, 4, v1')
    p('s_and_b32 s9, s2, 7')
    p('s_lshl_b32 s9, s9, 1')
    p('s_lshr_b32 s10, s2, 7')
    p('s_add_u32 s9, s9, s10')
    p('s_bfe_u32 s10, s2, 0x40003')


def allreduce_g(p, v, t, op='v_add_f32'):
    p(f'v_mov_b32 v{t}, v{v}')
    p(f'v_permlane16_swap_b32 v{v}, v{t}')
    p(f'{op} v{v}, v{v}, v{t}')
    p(f'v_mov_b32 v{t}, v{v}')
    p(f'v_permlane32_swap_b32 v{v}, v{t}')
    p(f'{op} v{v}, v{v}, v{t}')


def allreduce_g2(p, a, ta, b, tb):
    for sw in ('v_permlane16_swap_b32', 'v_permlane32_swap_b32'):
        p(f'v_mov_b32 v{ta}, v{a}')
        p(f'v_mov_b32 v{tb}, v{b}')
        p(f'{sw} v{a}, v{ta}')
        p(f'{sw} v{b}, v{tb}')
        p(f'v_add_f32 v{a}, v{a}, v{ta}')
        p(f'v_add_f32 v{b}, v{b}, v{tb}')


def var_from(p, s1, s2, mu, t):
    p(f'v_mul_f32 v{mu}, {f32(1.0 / D)}, v{s1}')
    p(f'v_mul_f32 v{t}, {f32(1.0 / D)}, v{s2}')
    p(f'v_fma_f32 v{t}, -v{mu}, v{mu}, v{t}')
    p(f'v_max_f32 v{t}, 0, v{t}')
    p(f'v_add_f32 v{t}, {f32(1e-5)}, v{t}')


QW_E, QW_O = 240, 241
QK_E, QK_O = 242, 243


def qkv_wdma_setup(p):
    p('v_lshrrev_b32 v5, 3, v1')
    p('v_and_b32 v6, 7, v1')
    p('v_bfe_u32 v7, v1, 4, 1')
    p('v_lshlrev_b32 v7, 1, v7')
    p('v_xor_b32 v6, v6, v7')
    p('v_xor_b32 v7, 4, v6')
    p('s_lshl_b32 s56, s8, 4')
    p('v_add_u32 v5, s56, v5')
    p(f'v_mul_u32_u24 v{QW_E}, 896, v5')
    p(f'v_add_u32 v{QW_O}, {8 * 896}, v{QW_E}')
    p(f'v_lshl_add_u32 v{QW_E}, v6, 4, v{QW_E}')
    p(f'v_lshl_add_u32 v{QW_O}, v7, 4, v{QW_O}')
    p('v_and_b32 v6, 3, v6')
    p('v_lshlrev_b32 v6, 4, v6')
    p('v_min_u32 v6, 40, v6')
    p(f'v_mad_u32_u24 v{QK_E}, v5, 56, v6')
    p(f'v_add_u32 v{QK_O}, {8 * 56}, v{QK_E}')


def qkv_wdma(p, G, kv, wbase, tag):
    out = []
    if not kv:
        out += ['s_mov_b32 m0, s58', 's_add_u32 s59, s58, 1024',
                f'buffer_load_dwordx4 v{QW_E}, s[32:35], s57 offen lds ; tag={tag}',
                's_mov_b32 m0, s59', 's_add_u32 s58, s58, 8192',
                f'buffer_load_dwordx4 v{QW_O}, s[32:35], s57 offen lds ; tag={tag}',
                f's_add_u32 s57, s57, {64 * 896}']
    else:
        out += ['s_mov_b32 m0, s58', 's_mov_b64 exec, s[60:61]',
                f'buffer_load_dwordx4 v{QK_E}, s[36:39], s57 offen lds ; tag={tag}',
                's_mov_b64 exec, s[62:63]',
                f'buffer_load_dwordx4 v{QK_E}, s[40:43], s57 offen lds ; tag={tag}',
                's_add_u32 m0, m0, 1024', 's_add_u32 s58, s58, 8192',
                f'buffer_load_dwordx4 v{QK_O}, s[36:39], s57 offen lds ; tag={tag}',
                's_mov_b64 exec, s[60:61]',
                f'buffer_load_dwordx4 v{QK_O}, s[40:43], s57 offen lds ; tag={tag}',
                's_mov_b64 exec, -1',
                f's_add_u32 s57, s57, {64 * 56}']
    return out


def qkv_wdma_init(p, kv, wbase):
    if kv:
        p('s_mov_b32 s57, 0')
        p('s_mov_b32 s60, 0x0f0f0f0f')
        p('s_mov_b32 s61, 0x0f0f0f0f')
        p('s_mov_b32 s62, 0xf0f0f0f0')
        p('s_mov_b32 s63, 0xf0f0f0f0')
    else:
        p('s_lshl_b32 s57, s54, 7')
    p('s_lshl_b32 s58, s8, 11')
    p(f's_add_u32 s58, s58, {wbase}')


def qkv_core(p, kv, lds_x, wbase, misc, XR, pre_group=None, stfl=''):
    ACC, SUM, GRM, CSM = 8, 24, 28, 32
    ON = 36
    WF = 40
    WA = 88
    SA = 96
    CS = 100
    T = 116
    for r in range(4):
        p(f'v_mov_b32 v{ON + r}, {ONES}')
    p('v_lshrrev_b32 v5, 2, v3')
    p('v_lshlrev_b32 v6, 7, v5')
    p('v_lshl_add_u32 v6, v4, 10, v6')
    p('v_and_b32 v7, 3, v1')
    p('v_lshl_add_u32 v6, v7, 3, v6')
    p(f'v_add_u32 v6, {wbase}, v6')
    p('v_lshrrev_b32 v5, 1, v5')
    p('v_and_b32 v7, 1, v4')
    p('v_lshl_or_b32 v5, v7, 1, v5')
    for nt in range(4):
        p(f'v_xor_b32 v7, {nt}, v5')
        p(f'v_lshl_add_u32 v{WA + nt}, v7, 5, v6')
    p('v_xor_b32 v7, s8, v5')
    p(f'v_lshl_add_u32 v{WA + 4}, v7, 5, v6')
    if not kv:
        p('s_lshr_b32 s64, s53, 1')
        p('s_lshl_b32 s64, s64, 15')
        p('s_add_u32 s64, s64, s51')
        p('s_and_b32 s65, s53, 1')
        p('s_lshl_b32 s65, s65, 8')
        p('s_add_u32 s64, s64, s65')
        p('s_lshl_b32 s65, s54, 4')
        for nt in range(4):
            p(f'v_add_u32 v5, s65, v4')
            if nt:
                p(f'v_add_u32 v5, {4 * nt}, v5')
            p('v_mul_u32_u24 v6, 147, v5')
            p('v_lshrrev_b32 v6, 10, v6')
            p('v_mul_u32_u24 v7, 7, v6')
            p('v_sub_u32 v5, v5, v7')
            p('v_lshlrev_b32 v6, 11, v6')
            p('v_lshl_add_u32 v6, v3, 4, v6')
            p('v_lshrrev_b32 v7, 1, v5')
            p('v_lshl_add_u32 v6, v7, 9, v6')
            p('v_and_b32 v5, 1, v5')
            p(f'v_lshl_add_u32 v{SA + nt}, v5, 3, v6')
    else:
        p('s_lshr_b32 s64, s53, 1')
        p('s_lshl_b32 s64, s64, 12')
        p('s_add_u32 s64, s64, s52')
        p('s_and_b32 s65, s53, 1')
        p('s_lshl_b32 s66, s65, 8')
        p('v_lshl_add_u32 v5, v3, 4, s66')
        p('v_lshrrev_b32 v6, 1, v4')
        p('v_lshl_add_u32 v5, v6, 9, v5')
        p('v_and_b32 v7, 1, v4')
        p(f'v_lshl_add_u32 v{SA}, v7, 3, v5')
        p('v_xor_b32 v7, v7, v6')
        p(f'v_lshl_add_u32 v{SA + 1}, v7, 3, v5')
        p('s_lshl_b32 s66, s65, 10')
        p('v_and_b32 v7, 1, v4')
        p('v_lshl_add_u32 v5, v7, 9, s66')
        p('v_lshl_add_u32 v5, v6, 3, v5')
        p(f'v_lshl_add_u32 v{SA + 2}, v3, 4, v5')
        p('v_lshrrev_b32 v6, 3, v3')
        p('v_lshlrev_b32 v6, 2, v6')
        p('v_xor_b32 v6, v6, v3')
        p(f'v_lshl_add_u32 v{SA + 3}, v6, 4, v5')

    def reads(ks):
        G, s = ks // 2, ks % 2
        b = WF + 24 * (ks % 2)
        o = []
        if lds_x:
            o.append(f'ds_read_b128 {vr(b + 20, 4)}, v{244 + s} offset:{G * 8192}')
        for t in range(5):
            for hf in range(2):
                o.append(f'ds_read_b64_tr_b16 {vr(b + 4 * t + 2 * hf, 2)}, v{WA + t} offset:{G * 8192 + s * 4096 + hf * 512}')
        return o

    def mfmas(ks):
        b = WF + 24 * (ks % 2)
        x = vr(b + 20, 4) if lds_x else vr(XR + 4 * ks, 4)
        o = []

        def c(r):
            return '0' if ks == 0 else vr(r, 4)
        o.append(f'{MF16} {vr(SUM, 4)}, {vr(ON, 4)}, {x}, {c(SUM)}')
        o.append(f'{MF16} {vr(GRM, 4)}, {x}, {x}, {c(GRM)}')
        for nt in range(4):
            a, bb = vr(b + 4 * nt, 4), x
            if kv and nt >= 2:
                a, bb = bb, a
            o.append(f'{MF16} {vr(ACC + 4 * nt, 4)}, {a}, {bb}, {c(ACC + 4 * nt)}')
        o.append(f'{MF16} {vr(CSM, 4)}, {vr(b + 16, 4)}, {vr(ON, 4)}, {c(CSM)}')
        return o

    if pre_group:
        pre_group(0)
    for t in reads(0):
        p(t)
    for ks in range(KS):
        nxt = []
        if ks + 1 < KS:
            if (ks + 1) % 2 == 0 and pre_group:
                pre_group((ks + 1) // 2)
            nxt = reads(ks + 1)
        for t in interleave(mfmas(ks), nxt):
            p(t)
    stamp(p, 12)
    p('s_lshl_b32 s65, s8, 6')
    p(f's_add_u32 s65, s65, {misc}')
    p('v_lshl_add_u32 v5, v4, 4, s65')
    p(f'ds_write_b128 v5, {vr(CSM, 4)}')
    p('v_and_b32 v6, 3, v1')
    p('v_cmp_eq_u32 vcc, 1, v6')
    p(f'v_cndmask_b32 v{T}, v{GRM}, v{GRM + 1}, vcc')
    p('v_cmp_eq_u32 vcc, 2, v6')
    p(f'v_cndmask_b32 v{T}, v{T}, v{GRM + 2}, vcc')
    p('v_cmp_eq_u32 vcc, 3, v6')
    p(f'v_cndmask_b32 v{T}, v{T}, v{GRM + 3}, vcc')
    p('v_lshrrev_b32 v6, 2, v3')
    p('v_cmp_eq_u32 vcc, v6, v4')
    p(f'v_cndmask_b32 v{T}, 0, v{T}, vcc')
    p('s_waitcnt lgkmcnt(0)')
    p('s_barrier')
    p(f'v_lshlrev_b32 v5, 4, v4')
    p(f'v_add_u32 v5, {misc}, v5')
    for nt in range(2 if kv else 4):
        p(f'ds_read_b128 {vr(CS + 4 * nt, 4)}, v5 offset:{64 * nt}')
    if kv:
        p('v_lshlrev_b32 v5, 2, v3')
        p(f'v_add_u32 v5, {misc}, v5')
        p(f'ds_read_b32 v{CS + 8}, v5 offset:128')
        p(f'ds_read_b32 v{CS + 9}, v5 offset:192')
    allreduce_g(p, T, T + 1)
    MU, RS = T + 2, T + 3
    var_from(p, SUM, T, MU, T + 1)
    p(f'v_rsq_f32 v{RS}, v{T + 1}')
    if not kv:
        p(f'v_mul_f32 v{RS}, {f32(QSCALE)}, v{RS}')
        for nt in range(4):
            a = ACC + 4 * nt
            for r in range(4):
                p(f'v_fma_f32 v{a + r}, -v{MU}, v{CS + 4 * nt + r}, v{a + r}')
            for r in range(4):
                p(f'v_mul_f32 v{a + r}, v{a + r}, v{RS}')
            p(f'v_cvt_pk_bf16_f32 v{a}, v{a}, v{a + 1}')
            p(f'v_cvt_pk_bf16_f32 v{a + 1}, v{a + 2}, v{a + 3}')
            p(f'buffer_store_dwordx2 {vr(a, 2)}, v{SA + nt}, s[4:7], s64 offen {stfl}')
    else:
        p('s_lshl_b32 s65, s8, 7')
        p(f's_add_u32 s65, s65, {misc + 256}')
        p('v_lshl_add_u32 v5, v3, 2, s65')
        p(f'ds_write_b32 v5, v{MU}')
        p(f'ds_write_b32 v5, v{RS} offset:64')
        p('v_lshl_add_u32 v5, v4, 4, s65')
        p('s_waitcnt lgkmcnt(0)')
        p(f'ds_read_b128 {vr(WF, 4)}, v5')
        p(f'ds_read_b128 {vr(WF + 4, 4)}, v5 offset:64')
        for nt in range(2):
            a = ACC + 4 * nt
            for r in range(4):
                p(f'v_fma_f32 v{a + r}, -v{MU}, v{CS + 4 * nt + r}, v{a + r}')
            for r in range(4):
                p(f'v_mul_f32 v{a + r}, v{a + r}, v{RS}')
            p(f'v_cvt_pk_bf16_f32 v{a}, v{a}, v{a + 1}')
            p(f'v_cvt_pk_bf16_f32 v{a + 1}, v{a + 2}, v{a + 3}')
            if nt == 1:
                p('v_cmp_eq_u32 vcc, 2, v4')
                p(f'v_mov_b32 v6, 0x3f80')
                p(f'v_cndmask_b32 v{a}, v{a}, v{ON}, vcc')
                p(f'v_cndmask_b32 v{a + 1}, v{a + 1}, v6, vcc')
            p(f'buffer_store_dwordx2 {vr(a, 2)}, v{SA + nt}, s[4:7], s64 offen offset:{1024 * nt} {stfl}')
        for nt in (2, 3):
            a = ACC + 4 * nt
            for r in range(4):
                p(f'v_fma_f32 v{a + r}, -v{WF + r}, v{CS + 8 + nt - 2}, v{a + r}')
            for r in range(4):
                p(f'v_mul_f32 v{a + r}, v{a + r}, v{WF + 4 + r}')
            p(f'v_cvt_pk_bf16_f32 v{a}, v{a}, v{a + 1}')
            p(f'v_cvt_pk_bf16_f32 v{a + 1}, v{a + 2}, v{a + 3}')
            if nt == 3:
                p('v_cmp_eq_u32 vcc, 8, v3')
                p(f'v_cndmask_b32 v6, 0, v{ON}, vcc')
                p('v_lshrrev_b32 v7, 2, v3')
                p('v_cmp_eq_u32 vcc, 2, v7')
                p(f'v_cndmask_b32 v{a}, v{a}, v6, vcc')
                p(f'v_cndmask_b32 v{a + 1}, v{a + 1}, v6, vcc')
            p(f'buffer_store_dwordx2 {vr(a, 2)}, v{SA + nt}, s[4:7], s64 offen offset:{2048 + 256 * (nt - 2)} {stfl}')


L1_X = 57344
L1_PREP = 114688
L1_MISC = 131072
L1_LDS = L1_MISC + 1024


def gen_qkv1(p):
    entry(p, 'qkv1_kernel')
    p('s_cmp_ge_u32 s2, 256')
    p('s_cbranch_scc1 q1_end')
    p('s_load_dwordx16 s[68:83], s[0:1], 0')
    p(f's_load_dwordx2 s[84:85], s[0:1], {K_W2}')
    p(f's_load_dwordx2 s[86:87], s[0:1], {K_WS}')
    lane_setup(p)
    p(f's_mov_b32 s51, {LAY[0]["QF"]}')
    p(f's_mov_b32 s52, {LAY[0]["KV"]}')
    p('s_lshr_b32 s53, s10, 3')
    p('s_lshl_b32 s53, s53, 2')
    p('s_lshl_b32 s56, s9, 3')
    p('s_add_u32 s53, s53, s56')
    p('s_add_u32 s53, s53, s8')
    p('s_and_b32 s54, s10, 7')
    qkv_wdma_setup(p)
    p('v_lshrrev_b32 v5, 3, v1')
    p('v_and_b32 v6, 7, v1')
    p('v_xor_b32 v6, v6, v4')
    p('v_xor_b32 v7, 4, v6')
    p('v_mul_u32_u24 v5, 896, v5')
    p('v_lshl_add_u32 v246, v6, 4, v5')
    p('v_lshl_add_u32 v247, v7, 4, v5')
    p(f'v_add_u32 v247, {8 * 896}, v247')
    p('v_lshrrev_b32 v5, 1, v3')
    p('v_xor_b32 v5, v5, v4')
    p('v_lshlrev_b32 v5, 4, v5')
    p('v_lshl_add_u32 v5, v3, 7, v5')
    p('s_lshl_b32 s56, s8, 11')
    p(f's_add_u32 s56, s56, {L1_X}')
    p('v_add_u32 v244, s56, v5')
    p('v_xor_b32 v245, 64, v244')
    p('s_mov_b32 s67, s56')
    p('s_mul_i32 s66, s53, 14336')
    srd(p, 12, 68, S * D * 2)
    srd(p, 32, 70, D * D * 2)
    srd(p, 36, 72, D * DH * 2)
    srd(p, 40, 74, D * DH * 2)
    srd(p, 4, 86, WS_END)

    def xdma(G):
        return ['s_mov_b32 m0, s55', 's_add_u32 s59, s55, 1024',
                f'buffer_load_dwordx4 v246, s[12:15], s50 offen lds ; tag=g{G}',
                's_mov_b32 m0, s59', 's_add_u32 s55, s55, 8192',
                f'buffer_load_dwordx4 v247, s[12:15], s50 offen lds ; tag=g{G}',
                's_add_u32 s50, s50, 128']

    p('s_mov_b32 s55, s67')
    p('s_mov_b32 s50, s66')

    def prep_setup():
        p('s_lshl_b32 s49, s2, 2')
        p('s_add_u32 s49, s49, s8')
        srd(p, 16, 76, D * D * 2)
        p('s_mov_b32 s44, 896')
        p('s_mov_b32 s47, 1')
        p('s_cmp_ge_u32 s49, 112')
        p('s_cbranch_scc1 q1_p1')
        p('s_lshr_b32 s45, s49, 4')
        p('s_lshl_b32 s45, s45, 7')
        p('s_and_b32 s46, s49, 15')
        p(f's_mul_i32 s46, s46, {28 * 896}')
        p('s_add_u32 s45, s45, s46')
        p(f's_add_u32 s46, s45, {16 * 896}')
        p('s_lshl_b32 s48, s49, 12')
        p(f's_add_u32 s48, s48, {WS_WO}')
        p('s_branch q1_pd')
        p.label('q1_p1')
        p('s_sub_u32 s49, s49, 112')
        p('s_cmp_ge_u32 s49, 392')
        p('s_cbranch_scc1 q1_p2')
        srd(p, 16, 80, D * F * 2)
        p('s_mov_b32 s44, 3584')
        p('s_mov_b32 s47, 2')
        p('s_mul_i32 s48, s49, 2341')
        p('s_lshr_b32 s48, s48, 16')
        p('s_mul_i32 s45, s48, 28')
        p('s_sub_u32 s49, s49, s45')
        p(f's_mul_i32 s45, s48, {32 * 3584}')
        p('s_lshl_b32 s46, s49, 7')
        p('s_add_u32 s45, s45, s46')
        p(f's_add_u32 s46, s45, {16 * 3584}')
        p('s_mul_i32 s48, s48, 7168')
        p(f's_add_u32 s48, s48, {WS_W1}')
        p('s_branch q1_pd')
        p.label('q1_p2')
        p('s_sub_u32 s49, s49, 392')
        p('s_mov_b32 s47, 0')
        p('s_mov_b32 s45, 0')
        p('s_mov_b32 s46, 0')
        p('s_mov_b32 s48, 0')
        p('s_cmp_ge_u32 s49, 392')
        p('s_cbranch_scc1 q1_pd')
        srd(p, 16, 84, F * D * 2)
        p('s_mov_b32 s47, 3')
        p('s_mul_i32 s48, s49, 9363')
        p('s_lshr_b32 s48, s48, 16')
        p('s_mul_i32 s45, s48, 7')
        p('s_sub_u32 s49, s49, s45')
        p('s_mul_i32 s45, s48, 147')
        p('s_lshr_b32 s45, s45, 10')
        p('s_mul_i32 s46, s45, 7')
        p('s_sub_u32 s46, s48, s46')
        p('s_mul_i32 s45, s45, 224')
        p('s_lshl_b32 s56, s46, 5')
        p('s_cmp_ge_u32 s46, 3')
        p('s_cselect_b32 s59, 16, 0')
        p('s_add_u32 s56, s56, s59')
        p('s_cmp_eq_u32 s46, 6')
        p('s_cselect_b32 s56, 96, s56')
        p('s_cselect_b32 s59, 112, 16')
        p('s_add_u32 s45, s45, s56')
        p('s_add_u32 s46, s45, s59')
        p('s_mul_i32 s45, s45, 896')
        p('s_mul_i32 s46, s46, 896')
        p('s_lshl_b32 s56, s49, 7')
        p('s_add_u32 s45, s45, s56')
        p('s_add_u32 s46, s46, s56')
        p(f's_mul_i32 s56, s49, {KB * 4096}')
        p('s_lshl_b32 s48, s48, 12')
        p('s_add_u32 s48, s48, s56')
        p(f's_add_u32 s48, s48, {WS_W2}')
        p.label('q1_pd')
        p('v_lshrrev_b32 v5, 3, v1')
        p('v_mul_lo_u32 v5, v5, s44')
        p('v_and_b32 v6, 7, v1')
        p('v_lshlrev_b32 v7, 1, v4')
        p('v_xor_b32 v6, v6, v7')
        p('v_lshl_add_u32 v248, v6, 4, v5')
        p('s_lshl_b32 s44, s44, 3')
        p('v_add_u32 v249, s44, v248')

    def prep_dma():
        p('s_lshl_b32 s56, s8, 12')
        p(f's_add_u32 m0, s56, {L1_PREP}')
        for i in range(4):
            p(f'buffer_load_dwordx4 v{248 + i % 2}, s[16:19], s{45 + i // 2} offen lds ; tag=prep')
            if i < 3:
                p('s_add_u32 m0, m0, 1024')

    def code_prefetch(sfx):
        if not CODEPF:
            return
        p('s_lshr_b32 s56, s2, 3')
        p('s_lshl_b32 s56, s56, 2')
        p('s_add_u32 s56, s56, s8')
        p('s_lshl_b32 s56, s56, 10')
        p('s_cmp_ge_u32 s56, x_code_end-x2_kernel')
        p(f's_cbranch_scc1 q1_cp{sfx}')
        p('s_getpc_b64 s[88:89]')
        p.label(f'q1_pc{sfx}')
        p(f's_add_u32 s88, s88, x2_kernel-q1_pc{sfx}')
        p('s_addc_u32 s89, s89, 0')
        p('v_add_u32 v250, s56, v2')
        p('global_load_dwordx4 v[148:151], v250, s[88:89]')
        p.label(f'q1_cp{sfx}')

    def prep_finish(sfx):
        p('s_cmp_eq_u32 s47, 0')
        p(f's_cbranch_scc1 q1_z{sfx}')
        p('v_lshrrev_b32 v5, 2, v1')
        p('v_lshlrev_b32 v6, 7, v5')
        p('v_and_b32 v7, 3, v1')
        p('v_lshl_add_u32 v6, v7, 3, v6')
        p('s_lshl_b32 s56, s8, 12')
        p(f's_add_u32 s56, s56, {L1_PREP}')
        p('v_add_u32 v6, s56, v6')
        p('v_bfe_u32 v5, v5, 1, 2')
        for nt in range(4):
            p(f'v_xor_b32 v7, {nt}, v5')
            p('v_lshl_add_u32 v7, v7, 5, v6')
            p(f'ds_read_b64_tr_b16 {vr(128 + 4 * nt, 2)}, v7')
            p(f'ds_read_b64_tr_b16 {vr(130 + 4 * nt, 2)}, v7 offset:2048')
        p('s_cmp_eq_u32 s47, 2')
        p(f's_cbranch_scc1 q1_s1{sfx}')
        p('s_cmp_eq_u32 s47, 3')
        p(f's_cbranch_scc1 q1_s0{sfx}')
        p('s_mov_b32 exec_lo, 0')
        p('s_mov_b32 exec_hi, 0xffff0000')
        for nt in range(4):
            p(f'v_mov_b32 v{130 + 4 * nt}, 0')
            p(f'v_mov_b32 v{131 + 4 * nt}, 0')
        p('s_mov_b64 exec, -1')
        p.label(f'q1_s0{sfx}')
        for nt in range(4):
            p(f'buffer_store_dwordx4 {vr(128 + 4 * nt, 4)}, v2, s[4:7], s48 offen offset:{1024 * nt}')
        p(f's_branch q1_z{sfx}')
        p.label(f'q1_s1{sfx}')
        for nt in range(4):
            p('s_lshl_b32 s56, s49, 2')
            p(f's_add_u32 s56, s56, {nt}')
            p('s_mul_i32 s57, s56, 147')
            p('s_lshr_b32 s57, s57, 10')
            p(f's_mul_i32 s57, s57, {KS * 7168 - 7168}')
            p('s_lshl_b32 s56, s56, 10')
            p('s_add_u32 s56, s56, s57')
            p('s_add_u32 s56, s56, s48')
            p(f'buffer_store_dwordx4 {vr(128 + 4 * nt, 4)}, v2, s[4:7], s56 offen')
        p.label(f'q1_z{sfx}')
        p('s_cmp_lt_u32 s2, 252')
        p(f's_cbranch_scc1 q1_e{sfx}')
        p('s_sub_u32 s56, s2, 252')
        p('s_lshl_b32 s56, s56, 2')
        p('s_add_u32 s56, s56, s8')
        p('s_lshl_b32 s56, s56, 10')
        p(f's_add_u32 s56, s56, {WS_CNT}')
        for r in range(4):
            p(f'v_mov_b32 v{144 + r}, 0')
        p('buffer_store_dwordx4 v[144:147], v2, s[4:7], s56 offen')
        p.label(f'q1_e{sfx}')
        endpgm(p)

    prep_setup()
    DEPTH = 4
    p('s_cmp_eq_u32 s54, 7')
    p('s_cbranch_scc1 q1_kv')
    for kv in (False, True):
        if kv:
            p.label('q1_kv')
        qkv_wdma_init(p, kv, 0)
        for G in range(DEPTH):
            for t in xdma(G) + qkv_wdma(p, G, kv, 0, f'g{G}'):
                p(t)
        stamp(p, 1)

        def pre(G, kv=kv):
            p(f';;need g{G}')
            p('s_barrier')
            if G == 0:
                stamp(p, 2)
            if G + DEPTH < 7:
                for t in xdma(G + DEPTH) + qkv_wdma(p, G + DEPTH, kv, 0, f'g{G + DEPTH}'):
                    p(t)
            if G + DEPTH == 7:
                prep_dma()
                code_prefetch('k' if kv else 'q')
        qkv_core(p, kv, True, 0, L1_MISC, None, pre)
        stamp(p, 13)
        prep_finish('k' if kv else 'q')
    p.label('q1_end')
    p('s_endpgm')
    kernels.append(('qkv1_kernel', 256, 256, 102))


X_W1 = 0
X_MISC = 98 * 1024
X_WO = 100 * 1024
X_LDS = 160 * 1024
SC = 'sc1'


def gen_x(p):
    def consts(L):
        l = LAY[L]
        p(f's_mov_b32 s11, {L}')
        for r, k in ((44, 'QF'), (45, 'KV'), (46, 'OF'), (47, 'X1F'), (48, 'ST1'), (49, 'HF'), (50, 'CNT')):
            p(f's_mov_b32 s{r}, {l[k]}')

    entry(p, 'x2_kernel')
    consts(1)
    p(f's_load_dwordx2 s[88:89], s[0:1], {K_WS}')
    p(f's_load_dwordx2 s[90:91], s[0:1], {K_OUT}')
    p(f's_mov_b32 s16, {WS_X2}')
    p('s_mov_b32 s17, 0')
    p('s_branch x_body')
    entry(p, 'x1_kernel')
    consts(0)
    p(f's_load_dwordx2 s[88:89], s[0:1], {K_AX}')
    p(f's_load_dwordx2 s[90:91], s[0:1], {K_WS}')
    p('s_mov_b32 s16, 0')
    p(f's_mov_b32 s17, {WS_X2}')
    p.label('x_body')
    p('s_cmp_ge_u32 s2, 256')
    p('s_cbranch_scc1 x_end')
    p(f's_load_dwordx2 s[92:93], s[0:1], {K_WS}')
    p('s_load_dwordx8 s[68:75], s[0:1], 0')
    p(f's_load_dwordx2 s[76:77], s[0:1], {K_B1}')
    p(f's_load_dwordx2 s[78:79], s[0:1], {K_B2}')
    lane_setup(p)
    p('s_cmp_ge_u32 s10, 7')
    p('s_cselect_b32 s18, 1, 0')
    p('s_mul_i32 s19, s18, 7')
    p('s_sub_u32 s19, s10, s19')
    p('s_cmp_ge_u32 s19, 7')
    p('s_cselect_b32 s19, 0, s19')
    p('s_lshl_b32 s55, s9, 3')
    p('s_lshl_b32 s56, s18, 2')
    p('s_add_u32 s55, s55, s56')
    srd(p, 4, 92, WS_END)

    Q, O, SB, PB, K0, KVR, T = 8, 40, 104, 136, 152, 160, 224
    RING = 4
    p('s_lshl_b32 s56, s9, 17')
    p('s_lshl_b32 s57, s10, 11')
    p('s_add_u32 s56, s56, s57')
    p('s_add_u32 s56, s56, s44')
    p(f'buffer_load_dwordx4 {vr(K0, 4)}, v2, s[4:7], s45 offen')
    p(f'buffer_load_dwordx4 {vr(K0 + 4, 4)}, v2, s[4:7], s45 offen offset:1024')
    for s in range(4):
        p(f's_add_u32 s57, s8, {s}')
        p('s_and_b32 s57, s57, 3')
        p('s_lshl_b32 s57, s57, 15')
        p('s_add_u32 s57, s57, s56')
        p(f'buffer_load_dwordx4 {vr(Q + 8 * s, 4)}, v2, s[4:7], s57 offen')
        p(f'buffer_load_dwordx4 {vr(Q + 8 * s + 4, 4)}, v2, s[4:7], s57 offen offset:1024')
    p('s_lshl_b32 s58, s8, 16')
    p('s_add_u32 s58, s58, s45')

    def kvld(t, j):
        o = [f'buffer_load_dwordx4 {vr(KVR + 16 * (t % RING) + 4 * j, 4)}, v2, s[4:7], s58 offen offset:{1024 * j}']
        if j == 3:
            o.append('s_add_u32 s58, s58, 4096')
        return o

    for t in range(RING - 1):
        for j in range(4):
            for x in kvld(t, j):
                p(x)
    srd(p, 12, 88, 0)
    p(f's_add_u32 s14, s16, {S * D * 2}')
    srd(p, 20, 90, 0)
    p(f's_add_u32 s22, s17, {S * D * 2}')
    srd(p, 24, 76, F * 2)
    srd(p, 28, 78, D * 2)
    srd(p, 32, 70, D * D * 2)
    srd(p, 36, 72, D * DH * 2)
    srd(p, 40, 74, D * DH * 2)
    p('s_mov_b32 s60, 0xffff0000')
    p('s_mov_b32 s61, 0x07060302')
    p('s_mov_b32 s62, 0')
    p('s_mov_b32 s63, -1')
    p(f's_mul_i32 s64, s19, {KB * 4096}')
    p(f's_mul_i32 s65, s8, {14 * 4096}')
    p('s_add_u32 s64, s64, s65')
    p(f's_add_u32 s64, s64, {WS_W2}')
    p('s_lshl_b32 s65, s19, 16')
    p(f's_add_u32 s65, s65, {WS_WO}')
    p(f's_mul_i32 s66, s10, {KS * 7168}')
    p(f's_add_u32 s66, s66, {WS_W1}')
    p(f's_add_u32 s67, s66, {48 * 1024}')
    p('s_lshl_b32 s59, s8, 10')
    p('v_add_u32 v5, s59, v2')
    p(f's_add_u32 m0, s59, {X_WO}')
    p('v_mul_u32_u24 v6, 896, v3')
    p('v_lshl_add_u32 v6, v4, 3, v6')
    p('s_add_u32 s68, s55, s8')
    p('s_mul_i32 s68, s68, 14336')
    p('s_lshl_b32 s69, s19, 7')
    p('s_add_u32 s68, s68, s69')
    p('s_add_u32 s69, s68, s16')
    p('v_bfe_u32 v7, v1, 4, 1')
    p('v_lshlrev_b32 v7, 14, v7')
    p('v_lshl_add_u32 v7, v3, 4, v7')
    p(f'v_lshrrev_b32 v{T}, 5, v1')
    p(f'v_lshl_add_u32 v7, v{T}, 8, v7')
    stamp(p, 1)
    p('s_mov_b64 exec, s[62:63]')
    for s in range(4):
        p(f'v_mov_b32 v{Q + 8 * s + 6}, 0')
        p(f'v_mov_b32 v{Q + 8 * s + 7}, 0')
    p('s_mov_b64 exec, -1')

    def tile_max_ops(sreg, m, t):
        return [f'v_max3_f32 v{m}, v{sreg}, v{sreg + 1}, v{sreg + 2}',
                f'v_max3_f32 v{t}, v{sreg + 3}, v{sreg + 4}, v{sreg + 5}',
                f'v_max3_f32 v{m}, v{m}, v{sreg + 6}, v{sreg + 7}',
                f'v_max3_f32 v{t}, v{t}, v{sreg + 8}, v{sreg + 9}',
                f'v_max3_f32 v{m}, v{m}, v{sreg + 10}, v{sreg + 11}',
                f'v_max3_f32 v{t}, v{t}, v{sreg + 12}, v{sreg + 13}',
                f'v_max3_f32 v{m}, v{m}, v{sreg + 14}, v{sreg + 15}',
                f'v_max_f32 v{m}, v{m}, v{t}']

    def neg_max(slots):
        for (qb, m, t1, t2) in slots:
            p(f'v_mov_b32 v{t1}, v{m}')
        for (qb, m, t1, t2) in slots:
            p(f'v_permlane32_swap_b32 v{m}, v{t1}')
        for (qb, m, t1, t2) in slots:
            p(f'v_max_f32 v{m}, v{m}, v{t1}')
        for (qb, m, t1, t2) in slots:
            p(f'v_sub_f32 v{m}, 0, v{m}')
            p(f'v_and_b32 v{t1}, s60, v{m}')
            p(f'v_sub_f32 v{m}, v{m}, v{t1}')
            p(f'v_and_b32 v{t2}, s60, v{m}')
            p(f'v_sub_f32 v{m}, v{m}, v{t2}')
        p('s_mov_b64 exec, s[62:63]')
        for (qb, m, t1, t2) in slots:
            p(f'v_perm_b32 v{qb + 6}, v{t2}, v{t1}, s61')
            p(f'v_lshrrev_b32 v{qb + 7}, 16, v{m}')
        p('s_mov_b64 exec, -1')

    for s in range(4):
        d = vr(O + 16 * s, 16)
        p(f'{MF32} {d}, {vr(K0, 4)}, {vr(Q + 8 * s, 4)}, 0')
        p(f'{MF32} {d}, {vr(K0 + 4, 4)}, {vr(Q + 8 * s + 4, 4)}, {d}')
    for s in range(4):
        for x in tile_max_ops(O + 16 * s, T + 4 * s, T + 4 * s + 1):
            p(x)
    neg_max([(Q + 8 * s, T + 4 * s, T + 4 * s + 1, T + 4 * s + 2) for s in range(4)])
    stamp(p, 2)

    def s_mfma(u, i):
        kt, s = (u // 4) % RING, u % 4
        d = vr(SB + 16 * (u % 2), 16)
        c = '0' if i == 0 else d
        return f'{MF32} {d}, {vr(KVR + 16 * kt + 4 * i, 4)}, {vr(Q + 8 * s + 4 * i, 4)}, {c}'

    def pv_mfma(u, i):
        kt, s = (u // 4) % RING, u % 4
        d = vr(O + 16 * s, 16)
        c = '0' if (u < 4 and i == 0) else d
        return f'{MF32} {d}, {vr(KVR + 16 * kt + 8 + 4 * i, 4)}, {vr(PB + 8 * (u % 2) + 4 * i, 4)}, {c}'

    pf = []
    for i in range(15):
        pf.append(['buffer_load_dwordx4 v5, s[4:7], s65 offen lds ; tag=wo', 's_add_u32 m0, m0, 4096',
                   's_add_u32 s65, s65, 4096'])
    for nt in range(4):
        pf.append([f'buffer_load_dwordx4 {ar(224 + 4 * nt, 4)}, v2, s[4:7], s65 offen offset:{1024 * nt}'])
    pf[-1].append(f's_add_u32 m0, s59, {48 * 1024}')
    for nt in range(4):
        pf.append([f'buffer_load_dwordx2 {ar(240 + 2 * nt, 2)}, v6, s[12:15], s69 offen offset:{32 * nt}'])
    for i in range(13):
        pf.append(['buffer_load_dwordx4 v5, s[4:7], s67 offen lds ; tag=w1', 's_add_u32 m0, m0, 4096',
                   's_add_u32 s67, s67, 4096'])
    for i in range(14):
        for nt in range(4):
            e = [f'buffer_load_dwordx4 {ar(16 * i + 4 * nt, 4)}, v2, s[4:7], s64 offen offset:{1024 * nt}']
            if nt == 3:
                e.append('s_add_u32 s64, s64, 4096')
            pf.append(e)
    NU = 64
    p(s_mfma(0, 0))
    p(s_mfma(0, 1))
    pfi = 0
    for u in range(NU):
        sb = SB + 16 * (u % 2)
        pb = PB + 8 * (u % 2)
        m = [s_mfma(u + 1, 0) if u + 1 < NU else None, s_mfma(u + 1, 1) if u + 1 < NU else None,
             pv_mfma(u - 1, 0) if u > 0 else None, pv_mfma(u - 1, 1) if u > 0 else None]
        t, j = u // 4, u % 4
        for q in range(4):
            if m[q]:
                p(m[q])
            if q == 3 and t + RING - 1 < 16 and not (t == 0 and False):
                for x in kvld(t + RING - 1, j):
                    p(x)
            if q in (0, 2) or (q == 3 and t + RING - 1 >= 16):
                want = (len(pf) * (3 * u + q + 1) + 3 * 60 - 1) // (3 * 60)
                if pfi < min(want, len(pf)):
                    for x in pf[pfi]:
                        p(x)
                    pfi += 1
            if q == 1:
                if j == 0 and u > 0 or u == 0:
                    pass
                if j == 0:
                    p(f';;use {vr(KVR + 16 * (t % RING) + 8, 8)}')
                if j == 2 and t + 1 < 16:
                    p(f';;use {vr(KVR + 16 * ((t + 1) % RING), 8)}')
            for jj in range(4):
                p(f'v_exp_f32 v{sb + 4 * q + jj}, v{sb + 4 * q + jj}')
            if q > 0:
                p(f'v_cvt_pk_bf16_f32 v{pb + 2 * q - 2}, v{sb + 4 * q - 4}, v{sb + 4 * q - 3}')
                p(f'v_cvt_pk_bf16_f32 v{pb + 2 * q - 1}, v{sb + 4 * q - 2}, v{sb + 4 * q - 1}')
        p(f'v_cvt_pk_bf16_f32 v{pb + 6}, v{sb + 12}, v{sb + 13}')
        p(f'v_cvt_pk_bf16_f32 v{pb + 7}, v{sb + 14}, v{sb + 15}')
    assert pfi == len(pf), (pfi, len(pf))
    p(pv_mfma(NU - 1, 0))
    p(pv_mfma(NU - 1, 1))
    stamp(p, 3)
    for s in range(1, 4):
        p(f's_add_u32 s56, s8, {s}')
        p('s_and_b32 s56, s56, 3')
        p('s_mul_i32 s56, s56, 12288')
        p(f'v_add_u32 v{T}, s56, v2')
        for j in range(4):
            p(f'ds_write_b128 v{T}, {vr(O + 16 * s + 4 * j, 4)} offset:{(s - 1) * 4096 + j * 1024}')
    p('s_mul_i32 s56, s8, 12288')
    p(f'v_add_u32 v{T}, s56, v2')
    p('s_lshl_b32 s56, s9, 17')
    p('s_lshl_b32 s57, s8, 15')
    p('s_add_u32 s56, s56, s57')
    p('s_lshl_b32 s57, s10, 10')
    p('s_add_u32 s56, s56, s57')
    p('s_add_u32 s56, s56, s46')
    p('s_waitcnt lgkmcnt(0)')
    p('s_barrier')
    for s in range(1, 4):
        for j in range(4):
            p(f'ds_read_b128 {vr(O + 16 * s + 4 * j, 4)}, v{T} offset:{(s - 1) * 4096 + j * 1024}')
    for s in range(1, 4):
        for r in range(16):
            p(f'v_add_f32 v{O + r}, v{O + r}, v{O + 16 * s + r}')
    p(f'v_add_f32 v{T}, |v{O}|, |v{O + 1}|')
    p(f'v_add_f32 v{T + 1}, |v{O + 2}|, |v{O + 3}|')
    for r in range(4, 16):
        p(f'v_add_f32 v{T + r % 2}, v{T + r % 2}, |v{O + r}|')
    p(f'v_add_f32 v{T}, v{T}, v{T + 1}')
    p(f'v_mov_b32 v{T + 1}, 0x7f800000')
    p(f'v_cmp_lt_f32 vcc, v{T}, v{T + 1}')
    p('s_cmp_eq_u64 vcc, -1')
    p('s_cbranch_scc0 attn_slow')
    p.label('attn_fin')
    p(f'v_mov_b32 v{T}, v{O + 12}')
    p(f'v_mov_b32 v{T + 1}, v{O + 12}')
    p(f'v_permlane32_swap_b32 v{T}, v{T + 1}')
    p(f'v_rcp_f32 v{T}, v{T + 1}')
    for r in range(16):
        p(f'v_mul_f32 v{O + r}, v{O + r}, v{T}')
    for rq in range(4):
        o = O + 16 + 4 * (rq % 2) + 2 * (rq // 2)
        p(f'v_cvt_pk_bf16_f32 v{o}, v{O + 4 * rq}, v{O + 4 * rq + 1}')
        p(f'v_cvt_pk_bf16_f32 v{o + 1}, v{O + 4 * rq + 2}, v{O + 4 * rq + 3}')
    p(f'buffer_store_dwordx4 {vr(O + 16, 4)}, v7, s[4:7], s56 offen {SC}')
    p(f'buffer_store_dwordx4 {vr(O + 20, 4)}, v7, s[4:7], s56 offen offset:512 {SC}')
    stamp(p, 4)

    def sync(k, nprod, helpers=None):
        p('s_waitcnt vmcnt(0)')
        p('s_barrier')
        p('s_cmp_lg_u32 s8, 0')
        p(f's_cbranch_scc1 sy{k}_h')
        p(f's_add_u32 s56, s9, {16 * k}')
        p('s_lshl_b32 s56, s56, 7')
        p('s_add_u32 s56, s56, s50')
        p('v_mov_b32 v252, 0')
        p('v_mov_b32 v253, 1')
        p('s_mov_b64 exec, 1')
        if nprod < 16:
            p(f's_cmp_ge_u32 s10, {nprod}')
            p(f's_cbranch_scc1 sy{k}_n')
        p('buffer_atomic_add v253, v252, s[4:7], s56 offen sc1')
        p.label(f'sy{k}_n')
        p('s_mov_b32 s57, 200000')
        p.label(f'sy{k}_p')
        p('buffer_load_dword v253, v252, s[4:7], s56 offen sc1')
        p('s_sub_u32 s57, s57, 1')
        p('s_waitcnt vmcnt(0)')
        p('v_readfirstlane_b32 s58, v253')
        p('s_cmp_eq_u32 s57, 0')
        p(f's_cbranch_scc1 sy{k}_q')
        p(f's_cmp_lt_u32 s58, {nprod}')
        p(f's_cbranch_scc1 sy{k}_p')
        p.label(f'sy{k}_q')
        p('s_mov_b64 exec, -1')
        p(f's_branch sy{k}_e')
        p.label(f'sy{k}_h')
        if helpers:
            helpers()
        p.label(f'sy{k}_e')
        p('s_barrier')

    def h_w1():
        p('s_sub_u32 s56, s8, 1')
        p('s_lshl_b32 s56, s56, 14')
        p('s_mov_b32 m0, s56')
        p('s_add_u32 s56, s56, s66')
        for i in range(4):
            for j in range(4):
                p(f'buffer_load_dwordx4 v2, s[4:7], s56 offen offset:{1024 * j} lds')
            if i < 3:
                p('s_add_u32 m0, m0, 4096')
                p('s_add_u32 s56, s56, 4096')

    sync(0, 16, h_w1)
    stamp(p, 5)

    X1K = 244
    p('s_cmp_ge_u32 s10, 14')
    p('s_cbranch_scc1 w_skip')
    XB, ACC, WF = 8, 72, 88
    p('s_add_u32 s56, s55, s8')
    p('s_lshl_b32 s57, s56, 14')
    p('s_add_u32 s57, s57, s46')
    for ks in range(16):
        if ks and ks % 4 == 0:
            p('s_add_u32 s57, s57, 4096')
        p(f'buffer_load_dwordx4 {vr(XB + 4 * ks, 4)}, v2, s[4:7], s57 offen offset:{1024 * (ks % 4)} {SC}')
    p(f'v_add_u32 v5, {X_WO}, v2')
    NBW = 3

    def wrd(ks):
        return [f'ds_read_b128 {vr(WF + 16 * (ks % NBW) + 4 * nt, 4)}, v5 offset:{(ks * 4 + nt) * 1024}' for nt in range(4)]
    for x in wrd(0) + wrd(1):
        p(x)
    p('s_mov_b32 s60, 0xffff0000')
    for j in range(8):
        p(f'v_accvgpr_read_b32 v{140 + j}, a{240 + j}')
    for j in range(8):
        p(f'v_lshlrev_b32 v{ACC + 2 * j}, 16, v{140 + j}')
        p(f'v_and_b32 v{ACC + 2 * j + 1}, s60, v{140 + j}')
    p('s_mul_i32 s57, s56, 14336')
    p('s_lshl_b32 s58, s19, 11')
    p('s_add_u32 s57, s57, s58')
    p('s_add_u32 s57, s57, s47')
    p('s_lshl_b32 s58, s56, 10')
    p('s_lshl_b32 s59, s19, 7')
    p('s_add_u32 s58, s58, s59')
    p('s_add_u32 s58, s58, s48')
    p('v_lshlrev_b32 v6, 3, v3')
    for ks in range(16):
        mf = []
        for nt in range(4):
            a = vr(WF + 16 * (ks % NBW) + 4 * nt, 4) if ks < 15 else ar(224 + 4 * nt, 4)
            d = vr(ACC + 4 * nt, 4)
            mf.append(f'{MF16} {d}, {a}, {vr(XB + 4 * ks, 4)}, {d}')
        for x in interleave(mf, wrd(ks + 2) if ks + 2 < 15 else []):
            p(x)
    stamp(p, 6)
    for j in range(8):
        p(f'v_cvt_pk_bf16_f32 v{X1K + j}, v{ACC + 2 * j}, v{ACC + 2 * j + 1}')
    p(f'buffer_store_dwordx4 {vr(X1K, 4)}, v2, s[4:7], s57 offen {SC}')
    p(f'buffer_store_dwordx4 {vr(X1K + 4, 4)}, v2, s[4:7], s57 offen offset:1024 {SC}')
    for j in range(8):
        p(f'v_lshlrev_b32 v{ACC + 2 * j}, 16, v{X1K + j}')
        p(f'v_and_b32 v{ACC + 2 * j + 1}, s60, v{X1K + j}')
    p(f'v_add_f32 v8, v{ACC}, v{ACC + 1}')
    p(f'v_mul_f32 v9, v{ACC}, v{ACC}')
    p(f'v_add_f32 v10, v{ACC + 2}, v{ACC + 3}')
    p(f'v_mul_f32 v11, v{ACC + 1}, v{ACC + 1}')
    for r in range(2, 16):
        if r >= 4:
            p(f'v_add_f32 v{8 + 2 * (r % 2)}, v{8 + 2 * (r % 2)}, v{ACC + r}')
        p(f'v_fmac_f32 v{9 + 2 * (r % 2)}, v{ACC + r}, v{ACC + r}')
    p('v_add_f32 v8, v8, v10')
    p('v_add_f32 v9, v9, v11')
    allreduce_g2(p, 8, 10, 9, 11)
    p('s_mov_b64 exec, 0xffff')
    p(f'buffer_store_dwordx2 v[8:9], v6, s[4:7], s58 offen {SC}')
    p('s_mov_b64 exec, -1')
    p.label('w_skip')

    def h_cs():
        for r in range(4):
            p(f'v_mov_b32 v{8 + r}, {ONES}')
        p('s_sub_u32 s56, s8, 1')
        p('s_lshl_b32 s57, s56, 10')
        p('v_add_u32 v5, s57, v2')
        p('v_add_u32 v6, 0xc400, v5')
        NBC = 4

        def rd(ks):
            va, k2 = ('v5', ks) if ks < 7 else ('v6', ks - 7)
            return [f'ds_read_b128 {vr(24 + 12 * (ks % NBC) + 4 * i, 4)}, {va} offset:{k2 * 7168 + i * 3072}' for i in range(3)]
        for ks in range(NBC - 1):
            for x in rd(ks):
                p(x)
        for ks in range(KS):
            mf = []
            for i in range(3):
                d = vr(12 + 4 * i, 4)
                mf.append(f'{MF16} {d}, {vr(24 + 12 * (ks % NBC) + 4 * i, 4)}, v[8:11], {"0" if ks == 0 else d}')
            for x in interleave(mf, rd(ks + NBC - 1) if ks + NBC - 1 < KS else []):
                p(x)
        p('s_lshl_b32 s57, s56, 6')
        p(f's_add_u32 s57, s57, {X_MISC}')
        p('v_lshl_add_u32 v5, v4, 4, s57')
        for i in range(3):
            p(f'ds_write_b128 v5, {vr(12 + 4 * i, 4)} offset:{192 * i}')
        p('s_waitcnt lgkmcnt(0)')

    BP = 226
    p('s_mul_i32 s59, s10, 224')
    p('v_lshlrev_b32 v7, 3, v4')
    for nt in range(7):
        p(f'buffer_load_dwordx2 {vr(BP + 2 * nt, 2)}, v7, s[24:27], s59 offen offset:{32 * nt}')
    sync(1, 14, h_cs)
    stamp(p, 7)

    XB, ACC, WF = 8, 120, 176
    TM = 208
    KC = 240
    p('s_lshl_b32 s56, s9, 3')
    p('s_lshl_b32 s57, s8, 1')
    p('s_add_u32 s56, s56, s57')
    p('s_lshl_b32 s57, s56, 10')
    p('s_add_u32 s57, s57, s48')
    p('v_lshlrev_b32 v5, 3, v3')
    p('v_lshl_add_u32 v5, v4, 8, v5')
    for m in range(2):
        p(f'buffer_load_dwordx2 {vr(TM + 4 * m, 2)}, v5, s[4:7], s57 offen offset:{1024 * m} {SC}')
        p(f'buffer_load_dwordx2 {vr(TM + 4 * m + 2, 2)}, v5, s[4:7], s57 offen offset:{1024 * m + 128} {SC}')
    p('s_mul_i32 s57, s56, 14336')
    p('s_add_u32 s57, s57, s47')
    p('s_add_u32 s58, s57, 14336')

    def xld(ks):
        o = []
        if ks and ks % 4 == 0:
            o += ['s_add_u32 s57, s57, 4096', 's_add_u32 s58, s58, 4096']
        o.append(f'buffer_load_dwordx4 {vr(XB + 4 * ks, 4)}, v2, s[4:7], s57 offen offset:{1024 * (ks % 4)} {SC}')
        o.append(f'buffer_load_dwordx4 {vr(XB + 56 + 4 * ks, 4)}, v2, s[4:7], s58 offen offset:{1024 * (ks % 4)} {SC}')
        return o
    XD = 7
    for ks in range(XD):
        for x in xld(ks):
            p(x)
    p('v_lshlrev_b32 v5, 4, v4')
    p(f'v_add_u32 v5, {X_MISC}, v5')
    for nt in range(7):
        p(f'ds_read_b128 {vr(ACC + 4 * nt, 4)}, v5 offset:{64 * nt}')
    p('v_add_u32 v6, 0xc400, v2')
    p('v_cmp_eq_u32 vcc, 3, v4')
    for m in range(2):
        b = TM + 4 * m
        p(f'v_cndmask_b32 v{b + 2}, v{b + 2}, 0, vcc')
        p(f'v_cndmask_b32 v{b + 3}, v{b + 3}, 0, vcc')
        p(f'v_add_f32 v{b}, v{b}, v{b + 2}')
        p(f'v_add_f32 v{b + 1}, v{b + 1}, v{b + 3}')
        allreduce_g2(p, b, b + 2, b + 1, b + 3)
        var_from(p, b, b + 1, b + 2, b + 3)
        p(f'v_rsq_f32 v{b}, v{b + 3}')
        p(f'v_mul_f32 v{252 + m}, v{b + 3}, v{b}')
    C0 = -2.0 * math.sqrt(2.0 / math.pi) * math.log2(math.e)
    for m in range(2):
        b = TM + 4 * m
        p(f'v_mul_f32 v{KC + 2 * m}, {f32(C0)}, v{b}')
        p(f'v_mul_f32 v{b + 1}, v{b}, v{b}')
        p(f'v_mul_f32 v{b + 1}, {f32(0.044715)}, v{b + 1}')
        p(f'v_mul_f32 v{KC + 2 * m + 1}, v{b + 1}, v{KC + 2 * m}')
    p('s_mov_b32 s60, 0xffff0000')
    for j in range(14):
        for h in range(2):
            i = 2 * j + h
            t = TM + 8 + (i % 4)
            if h == 0:
                p(f'v_lshlrev_b32 v{t}, 16, v{BP + j}')
            else:
                p(f'v_and_b32 v{t}, s60, v{BP + j}')
            p(f'v_mul_f32 v{ACC + 28 + i}, v{TM + 6}, v{ACC + i}')
            p(f'v_mul_f32 v{ACC + i}, v{TM + 2}, v{ACC + i}')
            p(f'v_fma_f32 v{ACC + 28 + i}, v{t}, v253, -v{ACC + 28 + i}')
            p(f'v_fma_f32 v{ACC + i}, v{t}, v252, -v{ACC + i}')
    p('s_lshr_b32 s59, s10, 1')
    p('s_mul_i32 s59, s59, 7168')
    p(f's_mul_i32 s61, s56, {KB * 1024}')
    p('s_add_u32 s59, s59, s61')
    p('s_add_u32 s59, s59, s49')
    p('s_and_b32 s61, s10, 1')
    p('s_mul_i32 s62, s61, 3072')
    p('s_add_u32 s62, s62, s59')
    p(f's_add_u32 s63, s62, {KB * 1024}')
    p('s_lshl_b32 s61, s61, 3')
    p('s_add_u32 s61, s61, s59')
    p('s_add_u32 s64, s61, 6144')
    p(f's_add_u32 s65, s64, {KB * 1024}')

    def f1_stream(tiles, with_x):
        n = len(tiles)
        nb = 32 // (4 * n) if n > 1 else 4
        nb = min(nb, 4)

        def rd(ks):
            va, k2 = ('v2', ks) if ks < 7 else ('v6', ks - 7)
            return [f'ds_read_b128 {vr(WF + 4 * n * (ks % nb) + 4 * i, 4)}, {va} offset:{k2 * 7168 + t * 1024}'
                    for i, t in enumerate(tiles)]
        head = []
        for ks in range(nb - 1):
            head += rd(ks)
        out = []
        for ks in range(KS):
            mf = []
            for i, t in enumerate(tiles):
                for m in range(2):
                    d = vr(ACC + 28 * m + 4 * t, 4)
                    mf.append(f'{MF16} {d}, {vr(WF + 4 * n * (ks % nb) + 4 * i, 4)}, {vr(XB + 56 * m + 4 * ks, 4)}, {d}')
            sec = rd(ks + nb - 1) if ks + nb - 1 < KS else []
            if with_x and ks + XD < KS:
                sec = sec + xld(ks + XD)
            out += interleave(mf, sec)
        return head, out

    def gelu(tiles):
        o = []
        for m in range(2):
            k0, k1, sg = KC + 2 * m, KC + 2 * m + 1, 252 + m
            for t in tiles:
                a = ACC + 28 * m + 4 * t
                tt = TM + 4 * ((t + m) % 4)
                for r in range(4):
                    o.append(f'v_mul_f32 v{tt + r}, v{a + r}, v{a + r}')
                for r in range(4):
                    o.append(f'v_fma_f32 v{tt + r}, v{tt + r}, v{k1}, v{k0}')
                for r in range(4):
                    o.append(f'v_mul_f32 v{tt + r}, v{tt + r}, v{a + r}')
                for r in range(4):
                    o.append(f'v_exp_f32 v{tt + r}, v{tt + r}')
                for r in range(4):
                    o.append(f'v_fma_f32 v{tt + r}, v{tt + r}, v{sg}, v{sg}')
                for r in range(4):
                    o.append(f'v_rcp_f32 v{tt + r}, v{tt + r}')
                for r in range(4):
                    o.append(f'v_mul_f32 v{a + r}, v{a + r}, v{tt + r}')
                q = ACC + 28 * m + 8 * (t // 2) + 2 * (t % 2)
                o.append(f'v_cvt_pk_bf16_f32 v{q}, v{a}, v{a + 1}')
                o.append(f'v_cvt_pk_bf16_f32 v{q + 1}, v{a + 2}, v{a + 3}')
                if t % 2 == 1:
                    o.append(f'buffer_store_dwordx4 {vr(q - 2, 4)}, v2, s[4:7], s{62 + m} offen offset:{1024 * (t // 2)} {SC}')
                if t == 6:
                    o.append(f'buffer_store_dwordx2 {vr(q, 2)}, v2, s[4:7], s{64 + m} offen {SC}')
        return o

    h0, b0 = f1_stream([0, 1, 2, 3], True)
    for x in h0 + b0:
        p(x)
    stamp(p, 8)
    h1, b1 = f1_stream([4, 5], False)
    for x in h1:
        p(x)
    p('s_cmp_eq_u32 s11, 1')
    p('s_cbranch_scc1 f1_nq')
    p('s_and_b32 s54, s10, 7')
    p('s_mov_b32 s66, s62')
    p('s_mov_b32 s67, s63')
    p('v_mov_b32 v224, v6')
    p('v_mov_b32 v226, v240')
    p('v_mov_b32 v227, v241')
    p('v_mov_b32 v228, v242')
    p('v_mov_b32 v229, v243')
    qkv_wdma_setup(p)
    p('s_cmp_eq_u32 s54, 7')
    p('s_cbranch_scc1 f1_kv')
    qkv_wdma_init(p, False, X_WO)
    for G in range(7):
        for x in qkv_wdma(p, G, False, X_WO, 'wq'):
            p(x)
    p('s_branch f1_q2')
    p.label('f1_kv')
    qkv_wdma_init(p, True, X_WO)
    for G in range(7):
        for x in qkv_wdma(p, G, True, X_WO, 'wq'):
            p(x)
    p.label('f1_q2')
    p('s_mov_b32 s62, s66')
    p('s_mov_b32 s63, s67')
    p('v_mov_b32 v6, v224')
    p('v_mov_b32 v240, v226')
    p('v_mov_b32 v241, v227')
    p('v_mov_b32 v242, v228')
    p('v_mov_b32 v243, v229')
    p.label('f1_nq')
    for x in interleave(b1, gelu([0, 1, 2, 3])):
        p(x)
    h2, b2 = f1_stream([6], False)
    for x in h2:
        p(x)
    for x in interleave(b2, gelu([4, 5]), start=2):
        p(x)
    stamp(p, 9)
    for x in gelu([6]):
        p(x)
    p('s_lshl_b32 s59, s19, 7')
    p('v_lshlrev_b32 v7, 3, v4')
    for nt in range(4):
        p(f'buffer_load_dwordx2 {vr(236 + 2 * nt, 2)}, v7, s[28:31], s59 offen offset:{32 * nt}')
    sync(2, 16)
    stamp(p, 10)

    p('s_cmp_ge_u32 s10, 14')
    p('s_cbranch_scc1 f2_skip')
    ACC, HR = 8, 72
    RB = 10
    HD = 5
    p('s_mul_i32 s56, s8, 14336')
    p(f's_mul_i32 s57, s55, {KB * 1024}')
    p('s_add_u32 s56, s56, s57')
    p('s_add_u32 s56, s56, s49')
    for s in range(4):
        p(f's_add_u32 s57, s8, {s}')
        p('s_and_b32 s57, s57, 3')
        p(f's_mul_i32 s57, s57, {KB * 1024}')
        p(f'v_add_u32 v{232 + s}, s57, v2')

    def hld(i):
        o = []
        if i and i % 4 == 0:
            o.append('s_add_u32 s56, s56, 4096')
        for s in range(4):
            o.append(f'buffer_load_dwordx4 {vr(HR + 16 * (i % RB) + 4 * s, 4)}, v{232 + s}, s[4:7], s56 offen offset:{1024 * (i % 4)} {SC}')
        return o
    for i in range(HD):
        for x in hld(i):
            p(x)
    p('s_mov_b32 s60, 0xffff0000')
    for j in range(8):
        p(f'v_lshlrev_b32 v{ACC + 2 * j}, 16, v{X1K + j}')
        p(f'v_and_b32 v{ACC + 2 * j + 1}, s60, v{X1K + j}')
        p(f'v_lshlrev_b32 v{ACC + 16 + 2 * j}, 16, v{236 + j}')
        p(f'v_and_b32 v{ACC + 17 + 2 * j}, s60, v{236 + j}')
    for r in range(16):
        p(f'v_add_f32 v{ACC + r}, v{ACC + r}, v{ACC + 16 + r}')
    for i in range(14):
        mf = []
        for s in range(4):
            for nt in range(4):
                d = vr(ACC + 16 * s + 4 * nt, 4)
                c = '0' if (i == 0 and s > 0) else d
                mf.append(f'{MF16} {d}, {ar(16 * i + 4 * nt, 4)}, {vr(HR + 16 * (i % RB) + 4 * s, 4)}, {c}')
        for x in interleave(mf, hld(i + HD) if i + HD < 14 else []):
            p(x)
    stamp(p, 11)
    for s in range(1, 4):
        p(f's_add_u32 s56, s8, {s}')
        p('s_and_b32 s56, s56, 3')
        p('s_mul_i32 s56, s56, 12288')
        p('v_add_u32 v5, s56, v2')
        for j in range(4):
            p(f'ds_write_b128 v5, {vr(ACC + 16 * s + 4 * j, 4)} offset:{(s - 1) * 4096 + j * 1024}')
    p('s_mul_i32 s56, s8, 12288')
    p('v_add_u32 v5, s56, v2')
    p('v_lshrrev_b32 v6, 1, v4')
    p('v_and_b32 v7, 1, v4')
    p('v_lshl_or_b32 v6, v7, 1, v6')
    p('v_mul_u32_u24 v7, 896, v3')
    p('v_lshl_add_u32 v7, v6, 4, v7')
    p('v_lshlrev_b32 v6, 8, v6')
    p('v_lshl_add_u32 v6, v3, 4, v6')
    p('s_add_u32 s57, s68, s17')
    p('s_add_u32 s58, s55, s8')
    p('s_mul_i32 s58, s58, 14336')
    p('s_lshl_b32 s59, s19, 11')
    p('s_add_u32 s58, s58, s59')
    p(f's_add_u32 s58, s58, {WS_X2N}')
    p('s_waitcnt lgkmcnt(0)')
    p('s_barrier')
    for s in range(1, 4):
        for j in range(4):
            p(f'ds_read_b128 {vr(ACC + 16 * s + 4 * j, 4)}, v5 offset:{(s - 1) * 4096 + j * 1024}')
    for s in range(1, 4):
        for r in range(16):
            p(f'v_add_f32 v{ACC + r}, v{ACC + r}, v{ACC + 16 * s + r}')
    for j in range(8):
        p(f'v_cvt_pk_bf16_f32 v{72 + j}, v{ACC + 2 * j}, v{ACC + 2 * j + 1}')
    for pp in range(2):
        p(f'v_permlane16_swap_b32 v{72 + 4 * pp}, v{74 + 4 * pp}')
        p(f'v_permlane16_swap_b32 v{73 + 4 * pp}, v{75 + 4 * pp}')
    p('s_cmp_eq_u32 s11, 1')
    p('s_cbranch_scc1 f2_out')
    for pp in range(2):
        p(f'buffer_store_dwordx4 {vr(72 + 4 * pp, 4)}, v6, s[4:7], s58 offen offset:{1024 * pp} {SC}')
    p.label('f2_out')
    for pp in range(2):
        p(f'buffer_store_dwordx4 {vr(72 + 4 * pp, 4)}, v7, s[20:23], s57 offen offset:{64 * pp}')
    p.label('f2_skip')
    p('s_cmp_eq_u32 s11, 1')
    p('s_cbranch_scc1 x_fin')
    sync(3, 14)
    stamp(p, 14)

    p(f's_mov_b32 s51, {LAY[1]["QF"]}')
    p(f's_mov_b32 s52, {LAY[1]["KV"]}')
    p('s_lshr_b32 s53, s10, 3')
    p('s_lshl_b32 s53, s53, 2')
    p('s_lshl_b32 s56, s9, 3')
    p('s_add_u32 s53, s53, s56')
    p('s_add_u32 s53, s53, s8')
    p('s_and_b32 s54, s10, 7')
    XR = 128
    p('s_mul_i32 s56, s53, 14336')
    p(f's_add_u32 s56, s56, {WS_X2N}')
    for ks in range(KS):
        if ks and ks % 4 == 0:
            p('s_add_u32 s56, s56, 4096')
        p(f'buffer_load_dwordx4 {vr(XR + 4 * ks, 4)}, v2, s[4:7], s56 offen offset:{1024 * (ks % 4)} {SC}')
    p('s_cmp_eq_u32 s54, 7')
    p('s_cbranch_scc1 xq_kv')
    qkv_core(p, False, False, X_WO, X_MISC, XR)
    p('s_branch x_fin')
    p.label('xq_kv')
    qkv_core(p, True, False, X_WO, X_MISC, XR)
    p.label('x_fin')
    endpgm(p)
    p.label('x_end')
    p('s_endpgm')

    p.label('attn_slow')
    p('s_mov_b64 exec, s[62:63]')
    p(f'v_mov_b32 v{Q + 6}, 0')
    p(f'v_mov_b32 v{Q + 7}, 0')
    p('s_mov_b64 exec, -1')
    p(f'v_mov_b32 v{T + 8}, 0xff800000')
    p('s_mov_b32 s58, s45')
    p('s_mov_b32 s57, 64')
    p.label('attn_slow1')
    p(f'buffer_load_dwordx4 {vr(KVR, 4)}, v2, s[4:7], s58 offen')
    p(f'buffer_load_dwordx4 {vr(KVR + 4, 4)}, v2, s[4:7], s58 offen offset:1024')
    p('s_add_u32 s58, s58, 4096')
    p(f'{MF32} {vr(SB, 16)}, {vr(KVR, 4)}, {vr(Q, 4)}, 0')
    p(f'{MF32} {vr(SB, 16)}, {vr(KVR + 4, 4)}, {vr(Q + 4, 4)}, {vr(SB, 16)}')
    for x in tile_max_ops(SB, T, T + 1):
        p(x)
    p(f'v_max_f32 v{T + 8}, v{T + 8}, v{T}')
    p('s_sub_u32 s57, s57, 1')
    p('s_cmp_lg_u32 s57, 0')
    p('s_cbranch_scc1 attn_slow1')
    neg_max([(Q, T + 8, T + 1, T + 2)])
    for r in range(16):
        p(f'v_mov_b32 v{O + r}, 0')
    p('s_mov_b32 s58, s45')
    p('s_mov_b32 s57, 64')
    p.label('attn_slow2')
    for j in range(4):
        for x in kvld(0, j):
            p(x)
    p(f'{MF32} {vr(SB, 16)}, {vr(KVR, 4)}, {vr(Q, 4)}, 0')
    p(f'{MF32} {vr(SB, 16)}, {vr(KVR + 4, 4)}, {vr(Q + 4, 4)}, {vr(SB, 16)}')
    for r in range(16):
        p(f'v_exp_f32 v{SB + r}, v{SB + r}')
    for r in range(8):
        p(f'v_cvt_pk_bf16_f32 v{PB + r}, v{SB + 2 * r}, v{SB + 2 * r + 1}')
    p(f'{MF32} {vr(O, 16)}, {vr(KVR + 8, 4)}, {vr(PB, 4)}, {vr(O, 16)}')
    p(f'{MF32} {vr(O, 16)}, {vr(KVR + 12, 4)}, {vr(PB + 4, 4)}, {vr(O, 16)}')
    p('s_sub_u32 s57, s57, 1')
    p('s_cmp_lg_u32 s57, 0')
    p('s_cbranch_scc1 attn_slow2')
    p('s_branch attn_fin')
    p('.p2align 10')
    p.label('x_code_end')
    p('s_endpgm')
    for k in ('x1_kernel', 'x2_kernel'):
        kernels.append((k, 512, 256, 102))


def main():
    p = Prog()
    gen_qkv1(p)
    gen_x(p)
    p.finish()
    launches = [('qkv1_kernel', 256, 256, L1_LDS), ('x1_kernel', 256, 256, X_LDS), ('x2_kernel', 256, 256, X_LDS)]
    out = ['; generated by gen/gen2.py (hand-written generator); see that script for the data layouts']
    for (k, g, b, l) in launches:
        out.append(f'; @launch kernel={k} grid=({g},1,1) block=({b},1,1) lds={l}')
    out.append('.amdgcn_target "amdgcn-amd-amdhsa--gfx950"')
    out.append('.text')
    out.append(p.text())
    out.append('.section .rodata,"a"')
    for (k, nv, acc, ns) in kernels:
        out.append('.p2align 6')
        out.append(f'.amdhsa_kernel {k}')
        out.append(f'  .amdhsa_next_free_vgpr {nv}')
        out.append(f'  .amdhsa_next_free_sgpr {ns}')
        out.append(f'  .amdhsa_accum_offset {acc}')
        out.append('  .amdhsa_group_segment_fixed_size 0')
        out.append('  .amdhsa_kernarg_size 104')
        out.append('  .amdhsa_user_sgpr_count 2')
        out.append('  .amdhsa_user_sgpr_kernarg_segment_ptr 1')
        out.append('  .amdhsa_system_sgpr_workgroup_id_x 1')
        out.append('.end_amdhsa_kernel')
    dst = sys.argv[1] if len(sys.argv) > 1 else f'cdna_kernels/{NAME}.s'
    open(dst, 'w').write('\n'.join(out) + '\n')
    json.dump(dict(V=2, WO=WS_WO, W1=WS_W1, W2=WS_W2, X2=WS_X2, X2N=WS_X2N, LAY=LAY, END=WS_END),
              open('layout.json', 'w'))
    print('wrote', dst, 'ws bytes', WS_END, 'max regs', p.max_regs(), 'instrs', len(p.ins))


if __name__ == '__main__':
    main()
```

```python
import json
import math
import os
import struct
import sys
from asmlib import Prog, vr, sr, ar, interleave

NAME = 'interleave_layers__grouped_kv_mqa__dense_activation_gelu__prompt'
S, D, H, DH, F = 2048, 448, 16, 28, 1792
KS = 14
KB = 56
STAMP = int(os.environ.get('STAMP', '0'))
WS_STAMP = 200 << 20
CODEPF = int(os.environ.get('CODEPF', '1'))


def f32(x):
    return '0x%08x' % struct.unpack('<I', struct.pack('<f', x))[0]


_off = 0


def alloc(n):
    global _off
    o = _off
    _off += (n + 4095) // 4096 * 4096
    return o


ACT = 128 * KS * 1024
WS_WO = alloc(7 * 16 * 4096)
WS_W1 = alloc(16 * KS * 7168 + 4096)
WS_W2 = alloc(7 * KB * 4096)
WS_X2 = alloc(ACT)
WS_X2N = alloc(ACT)
WS_CNT = alloc(2 * 4 * 16 * 128)
LAY = []
for L in range(2):
    LAY.append(dict(QF=alloc(64 * 16 * 2048), KV=alloc(64 * 4096), OF=alloc(128 * 16 * 1024), X1F=alloc(ACT),
                    ST1=alloc(128 * 1024), HF=alloc(128 * KB * 1024), CNT=WS_CNT + L * 8192))
WS_END = _off

K_AX, K_WQ, K_WK, K_WV, K_WO, K_BX, K_W1, K_B1, K_W2, K_B2, K_OUT, K_DBG, K_WS = [8 * i for i in range(13)]
QSCALE = DH ** -0.5 * math.log2(math.e)
MF16 = 'v_mfma_f32_16x16x32_bf16'
MF32 = 'v_mfma_f32_32x32x16_bf16'
ONES = '0x3f803f80'

kernels = []
LAUNCH_ID = {'qkv1_kernel': 0, 'x1_kernel': 1, 'x2_kernel': 2}
NST = 16


_dbg = 0


def stamp(p, i):
    if STAMP:
        p('s_memrealtime s[100:101]')
        p('s_waitcnt lgkmcnt(0)')
        p(f'v_writelane_b32 v255, s100, {i}')


def endpgm(p):
    if STAMP:
        p('s_waitcnt vmcnt(0)')
        stamp(p, 15)
        p(f's_load_dwordx2 s[96:97], s[0:1], {K_WS}')
        p('s_lshl_b32 s98, s2, 2')
        p('s_add_u32 s98, s98, s8')
        p('s_lshl_b32 s98, s98, 6')
        p('s_lshl_b32 s99, s3, 17')
        p('s_add_u32 s98, s98, s99')
        p(f's_add_u32 s98, s98, {WS_STAMP}')
        p('s_mov_b64 exec, -1')
        p('v_and_b32 v254, 63, v0')
        p('v_lshl_add_u32 v254, v254, 2, s98')
        p('s_mov_b64 exec, 0xffff')
        p('global_store_dword v254, v255, s[96:97]')
        if STAMP == 2:
            global _dbg
            _dbg += 1
            p('s_lshl_b32 s98, s2, 2')
            p('s_add_u32 s98, s98, s8')
            p('s_cmp_lg_u32 s98, 161')
            p(f's_cbranch_scc1 dbg_skip{_dbg}')
            p(f's_load_dwordx2 s[96:97], s[0:1], {K_DBG}')
            p('s_lshl_b32 s99, s3, 9')
            p('s_waitcnt lgkmcnt(0)')
            p('s_sub_u32 s96, s96, s99')
            p('s_subb_u32 s97, s97, 0')
            p('s_mov_b64 exec, -1')
            p('v_mov_b32 v254, 0x1000')
            tabs = {0: {0: 0, 2: 1, 15: 2}, 1: {0: 3, 2: 4, 3: 5, 5: 6, 7: 7, 10: 8, 14: 9, 15: 10}, 2: {0: 11, 3: 12, 7: 13, 10: 14, 15: 15}}
            for L, tab in tabs.items():
                p(f's_cmp_lg_u32 s3, {L}')
                p(f's_cbranch_scc1 dbg_n{_dbg}_{L}')
                for ln, slot in tab.items():
                    p(f's_mov_b32 s98, {4 * slot}')
                    p(f'v_writelane_b32 v254, s98, {ln}')
                p.label(f'dbg_n{_dbg}_{L}')
            p('v_cmp_gt_u32 vcc, 64, v254')
            p('s_and_b64 exec, exec, vcc')
            p('global_store_dword v254, v255, s[96:97]')
            p.label(f'dbg_skip{_dbg}')
    p('s_endpgm')


def srd(p, base, ptr, nbytes):
    p(f's_mov_b32 s{base}, s{ptr}')
    p(f's_and_b32 s{base + 1}, s{ptr + 1}, 0xffff')
    p(f's_mov_b32 s{base + 2}, {nbytes}')
    p(f's_mov_b32 s{base + 3}, 0x20000')


def entry(p, label):
    p('.p2align 8')
    p(f'.globl {label}')
    p(f'.type {label},@function')
    p.label(label)
    if STAMP:
        p(f's_mov_b32 s3, {LAUNCH_ID[label]}')
        p('v_mov_b32 v255, 0')
        stamp(p, 0)


def lane_setup(p):
    p('v_lshrrev_b32 v1, 6, v0')
    p('v_readfirstlane_b32 s8, v1')
    p('v_and_b32 v1, 63, v0')
    p('v_lshlrev_b32 v2, 4, v1')
    p('v_and_b32 v3, 15, v1')
    p('v_lshrrev_b32 v4, 4, v1')
    p('s_and_b32 s9, s2, 7')
    p('s_lshl_b32 s9, s9, 1')
    p('s_lshr_b32 s10, s2, 7')
    p('s_add_u32 s9, s9, s10')
    p('s_bfe_u32 s10, s2, 0x40003')


def allreduce_g(p, v, t, op='v_add_f32'):
    p(f'v_mov_b32 v{t}, v{v}')
    p(f'v_permlane16_swap_b32 v{v}, v{t}')
    p(f'{op} v{v}, v{v}, v{t}')
    p(f'v_mov_b32 v{t}, v{v}')
    p(f'v_permlane32_swap_b32 v{v}, v{t}')
    p(f'{op} v{v}, v{v}, v{t}')


def allreduce_g2(p, a, ta, b, tb):
    for sw in ('v_permlane16_swap_b32', 'v_permlane32_swap_b32'):
        p(f'v_mov_b32 v{ta}, v{a}')
        p(f'v_mov_b32 v{tb}, v{b}')
        p(f'{sw} v{a}, v{ta}')
        p(f'{sw} v{b}, v{tb}')
        p(f'v_add_f32 v{a}, v{a}, v{ta}')
        p(f'v_add_f32 v{b}, v{b}, v{tb}')


def var_from(p, s1, s2, mu, t):
    p(f'v_mul_f32 v{mu}, {f32(1.0 / D)}, v{s1}')
    p(f'v_mul_f32 v{t}, {f32(1.0 / D)}, v{s2}')
    p(f'v_fma_f32 v{t}, -v{mu}, v{mu}, v{t}')
    p(f'v_max_f32 v{t}, 0, v{t}')
    p(f'v_add_f32 v{t}, {f32(1e-5)}, v{t}')


QW_E, QW_O = 240, 241
QK_E, QK_O = 242, 243


def qkv_wdma_setup(p):
    p('v_lshrrev_b32 v5, 3, v1')
    p('v_and_b32 v6, 7, v1')
    p('v_bfe_u32 v7, v1, 4, 1')
    p('v_lshlrev_b32 v7, 1, v7')
    p('v_xor_b32 v6, v6, v7')
    p('v_xor_b32 v7, 4, v6')
    p('s_lshl_b32 s56, s8, 4')
    p('v_add_u32 v5, s56, v5')
    p(f'v_mul_u32_u24 v{QW_E}, 896, v5')
    p(f'v_add_u32 v{QW_O}, {8 * 896}, v{QW_E}')
    p(f'v_lshl_add_u32 v{QW_E}, v6, 4, v{QW_E}')
    p(f'v_lshl_add_u32 v{QW_O}, v7, 4, v{QW_O}')
    p('v_and_b32 v6, 3, v6')
    p('v_lshlrev_b32 v6, 4, v6')
    p('v_min_u32 v6, 40, v6')
    p(f'v_mad_u32_u24 v{QK_E}, v5, 56, v6')
    p(f'v_add_u32 v{QK_O}, {8 * 56}, v{QK_E}')


def qkv_wdma(p, G, kv, wbase, tag):
    out = []
    if not kv:
        out += ['s_mov_b32 m0, s58', 's_add_u32 s59, s58, 1024',
                f'buffer_load_dwordx4 v{QW_E}, s[32:35], s57 offen lds ; tag={tag}',
                's_mov_b32 m0, s59', 's_add_u32 s58, s58, 8192',
                f'buffer_load_dwordx4 v{QW_O}, s[32:35], s57 offen lds ; tag={tag}',
                f's_add_u32 s57, s57, {64 * 896}']
    else:
        out += ['s_mov_b32 m0, s58', 's_mov_b64 exec, s[60:61]',
                f'buffer_load_dwordx4 v{QK_E}, s[36:39], s57 offen lds ; tag={tag}',
                's_mov_b64 exec, s[62:63]',
                f'buffer_load_dwordx4 v{QK_E}, s[40:43], s57 offen lds ; tag={tag}',
                's_add_u32 m0, m0, 1024', 's_add_u32 s58, s58, 8192',
                f'buffer_load_dwordx4 v{QK_O}, s[36:39], s57 offen lds ; tag={tag}',
                's_mov_b64 exec, s[60:61]',
                f'buffer_load_dwordx4 v{QK_O}, s[40:43], s57 offen lds ; tag={tag}',
                's_mov_b64 exec, -1',
                f's_add_u32 s57, s57, {64 * 56}']
    return out


def qkv_wdma_init(p, kv, wbase):
    if kv:
        p('s_mov_b32 s57, 0')
        p('s_mov_b32 s60, 0x0f0f0f0f')
        p('s_mov_b32 s61, 0x0f0f0f0f')
        p('s_mov_b32 s62, 0xf0f0f0f0')
        p('s_mov_b32 s63, 0xf0f0f0f0')
    else:
        p('s_lshl_b32 s57, s54, 7')
    p('s_lshl_b32 s58, s8, 11')
    p(f's_add_u32 s58, s58, {wbase}')


def qkv_core(p, kv, lds_x, wbase, misc, XR, pre_group=None, stfl=''):
    ACC, SUM, GRM, CSM = 8, 24, 28, 32
    ON = 36
    WF = 40
    WA = 88
    SA = 96
    CS = 100
    T = 116
    for r in range(4):
        p(f'v_mov_b32 v{ON + r}, {ONES}')
    p('v_lshrrev_b32 v5, 2, v3')
    p('v_lshlrev_b32 v6, 7, v5')
    p('v_lshl_add_u32 v6, v4, 10, v6')
    p('v_and_b32 v7, 3, v1')
    p('v_lshl_add_u32 v6, v7, 3, v6')
    p(f'v_add_u32 v6, {wbase}, v6')
    p('v_lshrrev_b32 v5, 1, v5')
    p('v_and_b32 v7, 1, v4')
    p('v_lshl_or_b32 v5, v7, 1, v5')
    for nt in range(4):
        p(f'v_xor_b32 v7, {nt}, v5')
        p(f'v_lshl_add_u32 v{WA + nt}, v7, 5, v6')
    p('v_xor_b32 v7, s8, v5')
    p(f'v_lshl_add_u32 v{WA + 4}, v7, 5, v6')
    if not kv:
        p('s_lshr_b32 s64, s53, 1')
        p('s_lshl_b32 s64, s64, 15')
        p('s_add_u32 s64, s64, s51')
        p('s_and_b32 s65, s53, 1')
        p('s_lshl_b32 s65, s65, 8')
        p('s_add_u32 s64, s64, s65')
        p('s_lshl_b32 s65, s54, 4')
        for nt in range(4):
            p(f'v_add_u32 v5, s65, v4')
            if nt:
                p(f'v_add_u32 v5, {4 * nt}, v5')
            p('v_mul_u32_u24 v6, 147, v5')
            p('v_lshrrev_b32 v6, 10, v6')
            p('v_mul_u32_u24 v7, 7, v6')
            p('v_sub_u32 v5, v5, v7')
            p('v_lshlrev_b32 v6, 11, v6')
            p('v_lshl_add_u32 v6, v3, 4, v6')
            p('v_lshrrev_b32 v7, 1, v5')
            p('v_lshl_add_u32 v6, v7, 9, v6')
            p('v_and_b32 v5, 1, v5')
            p(f'v_lshl_add_u32 v{SA + nt}, v5, 3, v6')
    else:
        p('s_lshr_b32 s64, s53, 1')
        p('s_lshl_b32 s64, s64, 12')
        p('s_add_u32 s64, s64, s52')
        p('s_and_b32 s65, s53, 1')
        p('s_lshl_b32 s66, s65, 8')
        p('v_lshl_add_u32 v5, v3, 4, s66')
        p('v_lshrrev_b32 v6, 1, v4')
        p('v_lshl_add_u32 v5, v6, 9, v5')
        p('v_and_b32 v7, 1, v4')
        p(f'v_lshl_add_u32 v{SA}, v7, 3, v5')
        p('v_xor_b32 v7, v7, v6')
        p(f'v_lshl_add_u32 v{SA + 1}, v7, 3, v5')
        p('s_lshl_b32 s66, s65, 10')
        p('v_and_b32 v7, 1, v4')
        p('v_lshl_add_u32 v5, v7, 9, s66')
        p('v_lshl_add_u32 v5, v6, 3, v5')
        p(f'v_lshl_add_u32 v{SA + 2}, v3, 4, v5')
        p('v_lshrrev_b32 v6, 3, v3')
        p('v_lshlrev_b32 v6, 2, v6')
        p('v_xor_b32 v6, v6, v3')
        p(f'v_lshl_add_u32 v{SA + 3}, v6, 4, v5')

    def reads(ks):
        G, s = ks // 2, ks % 2
        b = WF + 24 * (ks % 2)
        o = []
        if lds_x:
            o.append(f'ds_read_b128 {vr(b + 20, 4)}, v{244 + s} offset:{G * 8192}')
        for t in range(5):
            for hf in range(2):
                o.append(f'ds_read_b64_tr_b16 {vr(b + 4 * t + 2 * hf, 2)}, v{WA + t} offset:{G * 8192 + s * 4096 + hf * 512}')
        return o

    def mfmas(ks):
        b = WF + 24 * (ks % 2)
        x = vr(b + 20, 4) if lds_x else vr(XR + 4 * ks, 4)
        o = []

        def c(r):
            return '0' if ks == 0 else vr(r, 4)
        o.append(f'{MF16} {vr(SUM, 4)}, {vr(ON, 4)}, {x}, {c(SUM)}')
        o.append(f'{MF16} {vr(GRM, 4)}, {x}, {x}, {c(GRM)}')
        for nt in range(4):
            a, bb = vr(b + 4 * nt, 4), x
            if kv and nt >= 2:
                a, bb = bb, a
            o.append(f'{MF16} {vr(ACC + 4 * nt, 4)}, {a}, {bb}, {c(ACC + 4 * nt)}')
        o.append(f'{MF16} {vr(CSM, 4)}, {vr(b + 16, 4)}, {vr(ON, 4)}, {c(CSM)}')
        return o

    if pre_group:
        pre_group(0)
    for t in reads(0):
        p(t)
    for ks in range(KS):
        nxt = []
        if ks + 1 < KS:
            if (ks + 1) % 2 == 0 and pre_group:
                pre_group((ks + 1) // 2)
            nxt = reads(ks + 1)
        for t in interleave(mfmas(ks), nxt):
            p(t)
    stamp(p, 12)
    p('s_lshl_b32 s65, s8, 6')
    p(f's_add_u32 s65, s65, {misc}')
    p('v_lshl_add_u32 v5, v4, 4, s65')
    p(f'ds_write_b128 v5, {vr(CSM, 4)}')
    p('v_and_b32 v6, 3, v1')
    p('v_cmp_eq_u32 vcc, 1, v6')
    p(f'v_cndmask_b32 v{T}, v{GRM}, v{GRM + 1}, vcc')
    p('v_cmp_eq_u32 vcc, 2, v6')
    p(f'v_cndmask_b32 v{T}, v{T}, v{GRM + 2}, vcc')
    p('v_cmp_eq_u32 vcc, 3, v6')
    p(f'v_cndmask_b32 v{T}, v{T}, v{GRM + 3}, vcc')
    p('v_lshrrev_b32 v6, 2, v3')
    p('v_cmp_eq_u32 vcc, v6, v4')
    p(f'v_cndmask_b32 v{T}, 0, v{T}, vcc')
    p('s_waitcnt lgkmcnt(0)')
    p('s_barrier')
    p(f'v_lshlrev_b32 v5, 4, v4')
    p(f'v_add_u32 v5, {misc}, v5')
    for nt in range(2 if kv else 4):
        p(f'ds_read_b128 {vr(CS + 4 * nt, 4)}, v5 offset:{64 * nt}')
    if kv:
        p('v_lshlrev_b32 v5, 2, v3')
        p(f'v_add_u32 v5, {misc}, v5')
        p(f'ds_read_b32 v{CS + 8}, v5 offset:128')
        p(f'ds_read_b32 v{CS + 9}, v5 offset:192')
    allreduce_g(p, T, T + 1)
    MU, RS = T + 2, T + 3
    var_from(p, SUM, T, MU, T + 1)
    p(f'v_rsq_f32 v{RS}, v{T + 1}')
    if not kv:
        p(f'v_mul_f32 v{RS}, {f32(QSCALE)}, v{RS}')
        for nt in range(4):
            a = ACC + 4 * nt
            for r in range(4):
                p(f'v_fma_f32 v{a + r}, -v{MU}, v{CS + 4 * nt + r}, v{a + r}')
            for r in range(4):
                p(f'v_mul_f32 v{a + r}, v{a + r}, v{RS}')
            p(f'v_cvt_pk_bf16_f32 v{a}, v{a}, v{a + 1}')
            p(f'v_cvt_pk_bf16_f32 v{a + 1}, v{a + 2}, v{a + 3}')
            p(f'buffer_store_dwordx2 {vr(a, 2)}, v{SA + nt}, s[4:7], s64 offen {stfl}')
    else:
        p('s_lshl_b32 s65, s8, 7')
        p(f's_add_u32 s65, s65, {misc + 256}')
        p('v_lshl_add_u32 v5, v3, 2, s65')
        p(f'ds_write_b32 v5, v{MU}')
        p(f'ds_write_b32 v5, v{RS} offset:64')
        p('v_lshl_add_u32 v5, v4, 4, s65')
        p('s_waitcnt lgkmcnt(0)')
        p(f'ds_read_b128 {vr(WF, 4)}, v5')
        p(f'ds_read_b128 {vr(WF + 4, 4)}, v5 offset:64')
        for nt in range(2):
            a = ACC + 4 * nt
            for r in range(4):
                p(f'v_fma_f32 v{a + r}, -v{MU}, v{CS + 4 * nt + r}, v{a + r}')
            for r in range(4):
                p(f'v_mul_f32 v{a + r}, v{a + r}, v{RS}')
            p(f'v_cvt_pk_bf16_f32 v{a}, v{a}, v{a + 1}')
            p(f'v_cvt_pk_bf16_f32 v{a + 1}, v{a + 2}, v{a + 3}')
            if nt == 1:
                p('v_cmp_eq_u32 vcc, 2, v4')
                p(f'v_mov_b32 v6, 0x3f80')
                p(f'v_cndmask_b32 v{a}, v{a}, v{ON}, vcc')
                p(f'v_cndmask_b32 v{a + 1}, v{a + 1}, v6, vcc')
            p(f'buffer_store_dwordx2 {vr(a, 2)}, v{SA + nt}, s[4:7], s64 offen offset:{1024 * nt} {stfl}')
        for nt in (2, 3):
            a = ACC + 4 * nt
            for r in range(4):
                p(f'v_fma_f32 v{a + r}, -v{WF + r}, v{CS + 8 + nt - 2}, v{a + r}')
            for r in range(4):
                p(f'v_mul_f32 v{a + r}, v{a + r}, v{WF + 4 + r}')
            p(f'v_cvt_pk_bf16_f32 v{a}, v{a}, v{a + 1}')
            p(f'v_cvt_pk_bf16_f32 v{a + 1}, v{a + 2}, v{a + 3}')
            if nt == 3:
                p('v_cmp_eq_u32 vcc, 8, v3')
                p(f'v_cndmask_b32 v6, 0, v{ON}, vcc')
                p('v_lshrrev_b32 v7, 2, v3')
                p('v_cmp_eq_u32 vcc, 2, v7')
                p(f'v_cndmask_b32 v{a}, v{a}, v6, vcc')
                p(f'v_cndmask_b32 v{a + 1}, v{a + 1}, v6, vcc')
            p(f'buffer_store_dwordx2 {vr(a, 2)}, v{SA + nt}, s[4:7], s64 offen offset:{2048 + 256 * (nt - 2)} {stfl}')


L1_X = 57344
L1_PREP = 114688
L1_MISC = 131072
L1_LDS = L1_MISC + 1024


def gen_qkv1(p):
    entry(p, 'qkv1_kernel')
    p('s_cmp_ge_u32 s2, 256')
    p('s_cbranch_scc1 q1_end')
    p('s_load_dwordx16 s[68:83], s[0:1], 0')
    p(f's_load_dwordx2 s[84:85], s[0:1], {K_W2}')
    p(f's_load_dwordx2 s[86:87], s[0:1], {K_WS}')
    lane_setup(p)
    p(f's_mov_b32 s51, {LAY[0]["QF"]}')
    p(f's_mov_b32 s52, {LAY[0]["KV"]}')
    p('s_lshr_b32 s53, s10, 3')
    p('s_lshl_b32 s53, s53, 2')
    p('s_lshl_b32 s56, s9, 3')
    p('s_add_u32 s53, s53, s56')
    p('s_add_u32 s53, s53, s8')
    p('s_and_b32 s54, s10, 7')
    qkv_wdma_setup(p)
    p('v_lshrrev_b32 v5, 3, v1')
    p('v_and_b32 v6, 7, v1')
    p('v_xor_b32 v6, v6, v4')
    p('v_xor_b32 v7, 4, v6')
    p('v_mul_u32_u24 v5, 896, v5')
    p('v_lshl_add_u32 v246, v6, 4, v5')
    p('v_lshl_add_u32 v247, v7, 4, v5')
    p(f'v_add_u32 v247, {8 * 896}, v247')
    p('v_lshrrev_b32 v5, 1, v3')
    p('v_xor_b32 v5, v5, v4')
    p('v_lshlrev_b32 v5, 4, v5')
    p('v_lshl_add_u32 v5, v3, 7, v5')
    p('s_lshl_b32 s56, s8, 11')
    p(f's_add_u32 s56, s56, {L1_X}')
    p('v_add_u32 v244, s56, v5')
    p('v_xor_b32 v245, 64, v244')
    p('s_mov_b32 s67, s56')
    p('s_mul_i32 s66, s53, 14336')
    srd(p, 12, 68, S * D * 2)
    srd(p, 32, 70, D * D * 2)
    srd(p, 36, 72, D * DH * 2)
    srd(p, 40, 74, D * DH * 2)
    srd(p, 4, 86, WS_END)

    def xdma(G):
        return ['s_mov_b32 m0, s55', 's_add_u32 s59, s55, 1024',
                f'buffer_load_dwordx4 v246, s[12:15], s50 offen lds ; tag=g{G}',
                's_mov_b32 m0, s59', 's_add_u32 s55, s55, 8192',
                f'buffer_load_dwordx4 v247, s[12:15], s50 offen lds ; tag=g{G}',
                's_add_u32 s50, s50, 128']

    p('s_mov_b32 s55, s67')
    p('s_mov_b32 s50, s66')

    def prep_setup():
        p('s_lshl_b32 s49, s2, 2')
        p('s_add_u32 s49, s49, s8')
        srd(p, 16, 76, D * D * 2)
        p('s_mov_b32 s44, 896')
        p('s_mov_b32 s47, 1')
        p('s_cmp_ge_u32 s49, 112')
        p('s_cbranch_scc1 q1_p1')
        p('s_lshr_b32 s45, s49, 4')
        p('s_lshl_b32 s45, s45, 7')
        p('s_and_b32 s46, s49, 15')
        p(f's_mul_i32 s46, s46, {28 * 896}')
        p('s_add_u32 s45, s45, s46')
        p(f's_add_u32 s46, s45, {16 * 896}')
        p('s_lshl_b32 s48, s49, 12')
        p(f's_add_u32 s48, s48, {WS_WO}')
        p('s_branch q1_pd')
        p.label('q1_p1')
        p('s_sub_u32 s49, s49, 112')
        p('s_cmp_ge_u32 s49, 392')
        p('s_cbranch_scc1 q1_p2')
        srd(p, 16, 80, D * F * 2)
        p('s_mov_b32 s44, 3584')
        p('s_mov_b32 s47, 2')
        p('s_mul_i32 s48, s49, 2341')
        p('s_lshr_b32 s48, s48, 16')
        p('s_mul_i32 s45, s48, 28')
        p('s_sub_u32 s49, s49, s45')
        p(f's_mul_i32 s45, s48, {32 * 3584}')
        p('s_lshl_b32 s46, s49, 7')
        p('s_add_u32 s45, s45, s46')
        p(f's_add_u32 s46, s45, {16 * 3584}')
        p('s_mul_i32 s48, s48, 7168')
        p(f's_add_u32 s48, s48, {WS_W1}')
        p('s_branch q1_pd')
        p.label('q1_p2')
        p('s_sub_u32 s49, s49, 392')
        p('s_mov_b32 s47, 0')
        p('s_mov_b32 s45, 0')
        p('s_mov_b32 s46, 0')
        p('s_mov_b32 s48, 0')
        p('s_cmp_ge_u32 s49, 392')
        p('s_cbranch_scc1 q1_pd')
        srd(p, 16, 84, F * D * 2)
        p('s_mov_b32 s47, 3')
        p('s_mul_i32 s48, s49, 9363')
        p('s_lshr_b32 s48, s48, 16')
        p('s_mul_i32 s45, s48, 7')
        p('s_sub_u32 s49, s49, s45')
        p('s_mul_i32 s45, s48, 147')
        p('s_lshr_b32 s45, s45, 10')
        p('s_mul_i32 s46, s45, 7')
        p('s_sub_u32 s46, s48, s46')
        p('s_mul_i32 s45, s45, 224')
        p('s_lshl_b32 s56, s46, 5')
        p('s_cmp_ge_u32 s46, 3')
        p('s_cselect_b32 s59, 16, 0')
        p('s_add_u32 s56, s56, s59')
        p('s_cmp_eq_u32 s46, 6')
        p('s_cselect_b32 s56, 96, s56')
        p('s_cselect_b32 s59, 112, 16')
        p('s_add_u32 s45, s45, s56')
        p('s_add_u32 s46, s45, s59')
        p('s_mul_i32 s45, s45, 896')
        p('s_mul_i32 s46, s46, 896')
        p('s_lshl_b32 s56, s49, 7')
        p('s_add_u32 s45, s45, s56')
        p('s_add_u32 s46, s46, s56')
        p(f's_mul_i32 s56, s49, {KB * 4096}')
        p('s_lshl_b32 s48, s48, 12')
        p('s_add_u32 s48, s48, s56')
        p(f's_add_u32 s48, s48, {WS_W2}')
        p.label('q1_pd')
        p('v_lshrrev_b32 v5, 3, v1')
        p('v_mul_lo_u32 v5, v5, s44')
        p('v_and_b32 v6, 7, v1')
        p('v_lshlrev_b32 v7, 1, v4')
        p('v_xor_b32 v6, v6, v7')
        p('v_lshl_add_u32 v248, v6, 4, v5')
        p('s_lshl_b32 s44, s44, 3')
        p('v_add_u32 v249, s44, v248')

    def prep_dma():
        p('s_lshl_b32 s56, s8, 12')
        p(f's_add_u32 m0, s56, {L1_PREP}')
        for i in range(4):
            p(f'buffer_load_dwordx4 v{248 + i % 2}, s[16:19], s{45 + i // 2} offen lds ; tag=prep')
            if i < 3:
                p('s_add_u32 m0, m0, 1024')

    def code_prefetch(sfx):
        if not CODEPF:
            return
        p('s_lshr_b32 s56, s2, 3')
        p('s_lshl_b32 s56, s56, 2')
        p('s_add_u32 s56, s56, s8')
        p('s_lshl_b32 s56, s56, 10')
        p('s_cmp_ge_u32 s56, x_code_end-x2_kernel')
        p(f's_cbranch_scc1 q1_cp{sfx}')
        p('s_getpc_b64 s[88:89]')
        p.label(f'q1_pc{sfx}')
        p(f's_add_u32 s88, s88, x2_kernel-q1_pc{sfx}')
        p('s_addc_u32 s89, s89, 0')
        p('v_add_u32 v250, s56, v2')
        p('global_load_dwordx4 v[148:151], v250, s[88:89]')
        p.label(f'q1_cp{sfx}')

    def prep_finish(sfx):
        p('s_cmp_eq_u32 s47, 0')
        p(f's_cbranch_scc1 q1_z{sfx}')
        p('v_lshrrev_b32 v5, 2, v1')
        p('v_lshlrev_b32 v6, 7, v5')
        p('v_and_b32 v7, 3, v1')
        p('v_lshl_add_u32 v6, v7, 3, v6')
        p('s_lshl_b32 s56, s8, 12')
        p(f's_add_u32 s56, s56, {L1_PREP}')
        p('v_add_u32 v6, s56, v6')
        p('v_bfe_u32 v5, v5, 1, 2')
        for nt in range(4):
            p(f'v_xor_b32 v7, {nt}, v5')
            p('v_lshl_add_u32 v7, v7, 5, v6')
            p(f'ds_read_b64_tr_b16 {vr(128 + 4 * nt, 2)}, v7')
            p(f'ds_read_b64_tr_b16 {vr(130 + 4 * nt, 2)}, v7 offset:2048')
        p('s_cmp_eq_u32 s47, 2')
        p(f's_cbranch_scc1 q1_s1{sfx}')
        p('s_cmp_eq_u32 s47, 3')
        p(f's_cbranch_scc1 q1_s0{sfx}')
        p('s_mov_b32 exec_lo, 0')
        p('s_mov_b32 exec_hi, 0xffff0000')
        for nt in range(4):
            p(f'v_mov_b32 v{130 + 4 * nt}, 0')
            p(f'v_mov_b32 v{131 + 4 * nt}, 0')
        p('s_mov_b64 exec, -1')
        p.label(f'q1_s0{sfx}')
        for nt in range(4):
            p(f'buffer_store_dwordx4 {vr(128 + 4 * nt, 4)}, v2, s[4:7], s48 offen offset:{1024 * nt}')
        p(f's_branch q1_z{sfx}')
        p.label(f'q1_s1{sfx}')
        for nt in range(4):
            p('s_lshl_b32 s56, s49, 2')
            p(f's_add_u32 s56, s56, {nt}')
            p('s_mul_i32 s57, s56, 147')
            p('s_lshr_b32 s57, s57, 10')
            p(f's_mul_i32 s57, s57, {KS * 7168 - 7168}')
            p('s_lshl_b32 s56, s56, 10')
            p('s_add_u32 s56, s56, s57')
            p('s_add_u32 s56, s56, s48')
            p(f'buffer_store_dwordx4 {vr(128 + 4 * nt, 4)}, v2, s[4:7], s56 offen')
        p.label(f'q1_z{sfx}')
        p('s_cmp_lt_u32 s2, 252')
        p(f's_cbranch_scc1 q1_e{sfx}')
        p('s_sub_u32 s56, s2, 252')
        p('s_lshl_b32 s56, s56, 2')
        p('s_add_u32 s56, s56, s8')
        p('s_lshl_b32 s56, s56, 10')
        p(f's_add_u32 s56, s56, {WS_CNT}')
        for r in range(4):
            p(f'v_mov_b32 v{144 + r}, 0')
        p('buffer_store_dwordx4 v[144:147], v2, s[4:7], s56 offen')
        p.label(f'q1_e{sfx}')
        endpgm(p)

    prep_setup()
    DEPTH = 4
    p('s_cmp_eq_u32 s54, 7')
    p('s_cbranch_scc1 q1_kv')
    for kv in (False, True):
        if kv:
            p.label('q1_kv')
        qkv_wdma_init(p, kv, 0)
        for G in range(DEPTH):
            for t in xdma(G) + qkv_wdma(p, G, kv, 0, f'g{G}'):
                p(t)
        stamp(p, 1)

        def pre(G, kv=kv):
            p(f';;need g{G}')
            p('s_barrier')
            if G == 0:
                stamp(p, 2)
            if G + DEPTH < 7:
                for t in xdma(G + DEPTH) + qkv_wdma(p, G + DEPTH, kv, 0, f'g{G + DEPTH}'):
                    p(t)
            if G + DEPTH == 7:
                prep_dma()
                code_prefetch('k' if kv else 'q')
        qkv_core(p, kv, True, 0, L1_MISC, None, pre)
        stamp(p, 13)
        prep_finish('k' if kv else 'q')
    p.label('q1_end')
    p('s_endpgm')
    kernels.append(('qkv1_kernel', 256, 256, 102))


X_W1 = 0
X_MISC = 98 * 1024
X_WO = 100 * 1024
X_LDS = 160 * 1024
SC = 'sc1'


def gen_x(p):
    def consts(L):
        l = LAY[L]
        p(f's_mov_b32 s11, {L}')
        for r, k in ((44, 'QF'), (45, 'KV'), (46, 'OF'), (47, 'X1F'), (48, 'ST1'), (49, 'HF'), (50, 'CNT')):
            p(f's_mov_b32 s{r}, {l[k]}')

    entry(p, 'x2_kernel')
    consts(1)
    p(f's_load_dwordx2 s[88:89], s[0:1], {K_WS}')
    p(f's_load_dwordx2 s[90:91], s[0:1], {K_OUT}')
    p(f's_mov_b32 s16, {WS_X2}')
    p('s_mov_b32 s17, 0')
    p('s_branch x_body')
    entry(p, 'x1_kernel')
    consts(0)
    p(f's_load_dwordx2 s[88:89], s[0:1], {K_AX}')
    p(f's_load_dwordx2 s[90:91], s[0:1], {K_WS}')
    p('s_mov_b32 s16, 0')
    p(f's_mov_b32 s17, {WS_X2}')
    p.label('x_body')
    p('s_cmp_ge_u32 s2, 256')
    p('s_cbranch_scc1 x_end')
    p(f's_load_dwordx2 s[92:93], s[0:1], {K_WS}')
    p('s_load_dwordx8 s[68:75], s[0:1], 0')
    p(f's_load_dwordx2 s[76:77], s[0:1], {K_B1}')
    p(f's_load_dwordx2 s[78:79], s[0:1], {K_B2}')
    lane_setup(p)
    p('s_cmp_ge_u32 s10, 7')
    p('s_cselect_b32 s18, 1, 0')
    p('s_mul_i32 s19, s18, 7')
    p('s_sub_u32 s19, s10, s19')
    p('s_cmp_ge_u32 s19, 7')
    p('s_cselect_b32 s19, 0, s19')
    p('s_lshl_b32 s55, s9, 3')
    p('s_lshl_b32 s56, s18, 2')
    p('s_add_u32 s55, s55, s56')
    srd(p, 4, 92, WS_END)

    Q, O, SB, PB, K0, KVR, T = 8, 40, 104, 136, 152, 160, 224
    RING = 4
    p('s_lshl_b32 s56, s9, 17')
    p('s_lshl_b32 s57, s10, 11')
    p('s_add_u32 s56, s56, s57')
    p('s_add_u32 s56, s56, s44')
    p(f'buffer_load_dwordx4 {vr(K0, 4)}, v2, s[4:7], s45 offen')
    p(f'buffer_load_dwordx4 {vr(K0 + 4, 4)}, v2, s[4:7], s45 offen offset:1024')
    for s in range(4):
        p(f's_add_u32 s57, s8, {s}')
        p('s_and_b32 s57, s57, 3')
        p('s_lshl_b32 s57, s57, 15')
        p('s_add_u32 s57, s57, s56')
        p(f'buffer_load_dwordx4 {vr(Q + 8 * s, 4)}, v2, s[4:7], s57 offen')
        p(f'buffer_load_dwordx4 {vr(Q + 8 * s + 4, 4)}, v2, s[4:7], s57 offen offset:1024')
    p('s_lshl_b32 s58, s8, 16')
    p('s_add_u32 s58, s58, s45')

    def kvld(t, j):
        o = [f'buffer_load_dwordx4 {vr(KVR + 16 * (t % RING) + 4 * j, 4)}, v2, s[4:7], s58 offen offset:{1024 * j}']
        if j == 3:
            o.append('s_add_u32 s58, s58, 4096')
        return o

    for t in range(RING - 1):
        for j in range(4):
            for x in kvld(t, j):
                p(x)
    srd(p, 12, 88, 0)
    p(f's_add_u32 s14, s16, {S * D * 2}')
    srd(p, 20, 90, 0)
    p(f's_add_u32 s22, s17, {S * D * 2}')
    srd(p, 24, 76, F * 2)
    srd(p, 28, 78, D * 2)
    srd(p, 32, 70, D * D * 2)
    srd(p, 36, 72, D * DH * 2)
    srd(p, 40, 74, D * DH * 2)
    p('s_mov_b32 s60, 0xffff0000')
    p('s_mov_b32 s61, 0x07060302')
    p('s_mov_b32 s62, 0')
    p('s_mov_b32 s63, -1')
    p(f's_mul_i32 s64, s19, {KB * 4096}')
    p(f's_mul_i32 s65, s8, {14 * 4096}')
    p('s_add_u32 s64, s64, s65')
    p(f's_add_u32 s64, s64, {WS_W2}')
    p('s_lshl_b32 s65, s19, 16')
    p(f's_add_u32 s65, s65, {WS_WO}')
    p(f's_mul_i32 s66, s10, {KS * 7168}')
    p(f's_add_u32 s66, s66, {WS_W1}')
    p(f's_add_u32 s67, s66, {48 * 1024}')
    p('s_lshl_b32 s59, s8, 10')
    p('v_add_u32 v5, s59, v2')
    p(f's_add_u32 m0, s59, {X_WO}')
    p('v_mul_u32_u24 v6, 896, v3')
    p('v_lshl_add_u32 v6, v4, 3, v6')
    p('s_add_u32 s68, s55, s8')
    p('s_mul_i32 s68, s68, 14336')
    p('s_lshl_b32 s69, s19, 7')
    p('s_add_u32 s68, s68, s69')
    p('s_add_u32 s69, s68, s16')
    p('v_bfe_u32 v7, v1, 4, 1')
    p('v_lshlrev_b32 v7, 14, v7')
    p('v_lshl_add_u32 v7, v3, 4, v7')
    p(f'v_lshrrev_b32 v{T}, 5, v1')
    p(f'v_lshl_add_u32 v7, v{T}, 8, v7')
    stamp(p, 1)
    p('s_mov_b64 exec, s[62:63]')
    for s in range(4):
        p(f'v_mov_b32 v{Q + 8 * s + 6}, 0')
        p(f'v_mov_b32 v{Q + 8 * s + 7}, 0')
    p('s_mov_b64 exec, -1')

    def tile_max_ops(sreg, m, t):
        return [f'v_max3_f32 v{m}, v{sreg}, v{sreg + 1}, v{sreg + 2}',
                f'v_max3_f32 v{t}, v{sreg + 3}, v{sreg + 4}, v{sreg + 5}',
                f'v_max3_f32 v{m}, v{m}, v{sreg + 6}, v{sreg + 7}',
                f'v_max3_f32 v{t}, v{t}, v{sreg + 8}, v{sreg + 9}',
                f'v_max3_f32 v{m}, v{m}, v{sreg + 10}, v{sreg + 11}',
                f'v_max3_f32 v{t}, v{t}, v{sreg + 12}, v{sreg + 13}',
                f'v_max3_f32 v{m}, v{m}, v{sreg + 14}, v{sreg + 15}',
                f'v_max_f32 v{m}, v{m}, v{t}']

    def neg_max(slots):
        for (qb, m, t1, t2) in slots:
            p(f'v_mov_b32 v{t1}, v{m}')
        for (qb, m, t1, t2) in slots:
            p(f'v_permlane32_swap_b32 v{m}, v{t1}')
        for (qb, m, t1, t2) in slots:
            p(f'v_max_f32 v{m}, v{m}, v{t1}')
        for (qb, m, t1, t2) in slots:
            p(f'v_sub_f32 v{m}, 0, v{m}')
            p(f'v_and_b32 v{t1}, s60, v{m}')
            p(f'v_sub_f32 v{m}, v{m}, v{t1}')
            p(f'v_and_b32 v{t2}, s60, v{m}')
            p(f'v_sub_f32 v{m}, v{m}, v{t2}')
        p('s_mov_b64 exec, s[62:63]')
        for (qb, m, t1, t2) in slots:
            p(f'v_perm_b32 v{qb + 6}, v{t2}, v{t1}, s61')
            p(f'v_lshrrev_b32 v{qb + 7}, 16, v{m}')
        p('s_mov_b64 exec, -1')

    for s in range(4):
        d = vr(O + 16 * s, 16)
        p(f'{MF32} {d}, {vr(K0, 4)}, {vr(Q + 8 * s, 4)}, 0')
        p(f'{MF32} {d}, {vr(K0 + 4, 4)}, {vr(Q + 8 * s + 4, 4)}, {d}')
    for s in range(4):
        for x in tile_max_ops(O + 16 * s, T + 4 * s, T + 4 * s + 1):
            p(x)
    neg_max([(Q + 8 * s, T + 4 * s, T + 4 * s + 1, T + 4 * s + 2) for s in range(4)])
    stamp(p, 2)

    def s_mfma(u, i):
        kt, s = (u // 4) % RING, u % 4
        d = vr(SB + 16 * (u % 2), 16)
        c = '0' if i == 0 else d
        return f'{MF32} {d}, {vr(KVR + 16 * kt + 4 * i, 4)}, {vr(Q + 8 * s + 4 * i, 4)}, {c}'

    def pv_mfma(u, i):
        kt, s = (u // 4) % RING, u % 4
        d = vr(O + 16 * s, 16)
        c = '0' if (u < 4 and i == 0) else d
        return f'{MF32} {d}, {vr(KVR + 16 * kt + 8 + 4 * i, 4)}, {vr(PB + 8 * (u % 2) + 4 * i, 4)}, {c}'

    pf = []
    for i in range(15):
        pf.append(['buffer_load_dwordx4 v5, s[4:7], s65 offen lds ; tag=wo', 's_add_u32 m0, m0, 4096',
                   's_add_u32 s65, s65, 4096'])
    for nt in range(4):
        pf.append([f'buffer_load_dwordx4 {ar(224 + 4 * nt, 4)}, v2, s[4:7], s65 offen offset:{1024 * nt}'])
    pf[-1].append(f's_add_u32 m0, s59, {48 * 1024}')
    for nt in range(4):
        pf.append([f'buffer_load_dwordx2 {ar(240 + 2 * nt, 2)}, v6, s[12:15], s69 offen offset:{32 * nt}'])
    for i in range(13):
        pf.append(['buffer_load_dwordx4 v5, s[4:7], s67 offen lds ; tag=w1', 's_add_u32 m0, m0, 4096',
                   's_add_u32 s67, s67, 4096'])
    for i in range(14):
        for nt in range(4):
            e = [f'buffer_load_dwordx4 {ar(16 * i + 4 * nt, 4)}, v2, s[4:7], s64 offen offset:{1024 * nt}']
            if nt == 3:
                e.append('s_add_u32 s64, s64, 4096')
            pf.append(e)
    NU = 64
    p(s_mfma(0, 0))
    p(s_mfma(0, 1))
    pfi = 0
    for u in range(NU):
        sb = SB + 16 * (u % 2)
        pb = PB + 8 * (u % 2)
        m = [s_mfma(u + 1, 0) if u + 1 < NU else None, s_mfma(u + 1, 1) if u + 1 < NU else None,
             pv_mfma(u - 1, 0) if u > 0 else None, pv_mfma(u - 1, 1) if u > 0 else None]
        t, j = u // 4, u % 4
        for q in range(4):
            if m[q]:
                p(m[q])
            if q == 3 and t + RING - 1 < 16 and not (t == 0 and False):
                for x in kvld(t + RING - 1, j):
                    p(x)
            if q in (0, 2) or (q == 3 and t + RING - 1 >= 16):
                want = (len(pf) * (3 * u + q + 1) + 3 * 60 - 1) // (3 * 60)
                if pfi < min(want, len(pf)):
                    for x in pf[pfi]:
                        p(x)
                    pfi += 1
            if q == 1:
                if j == 0 and u > 0 or u == 0:
                    pass
                if j == 0:
                    p(f';;use {vr(KVR + 16 * (t % RING) + 8, 8)}')
                if j == 2 and t + 1 < 16:
                    p(f';;use {vr(KVR + 16 * ((t + 1) % RING), 8)}')
            for jj in range(4):
                p(f'v_exp_f32 v{sb + 4 * q + jj}, v{sb + 4 * q + jj}')
            if q > 0:
                p(f'v_cvt_pk_bf16_f32 v{pb + 2 * q - 2}, v{sb + 4 * q - 4}, v{sb + 4 * q - 3}')
                p(f'v_cvt_pk_bf16_f32 v{pb + 2 * q - 1}, v{sb + 4 * q - 2}, v{sb + 4 * q - 1}')
        p(f'v_cvt_pk_bf16_f32 v{pb + 6}, v{sb + 12}, v{sb + 13}')
        p(f'v_cvt_pk_bf16_f32 v{pb + 7}, v{sb + 14}, v{sb + 15}')
    assert pfi == len(pf), (pfi, len(pf))
    p(pv_mfma(NU - 1, 0))
    p(pv_mfma(NU - 1, 1))
    stamp(p, 3)
    for s in range(1, 4):
        p(f's_add_u32 s56, s8, {s}')
        p('s_and_b32 s56, s56, 3')
        p('s_mul_i32 s56, s56, 12288')
        p(f'v_add_u32 v{T}, s56, v2')
        for j in range(4):
            p(f'ds_write_b128 v{T}, {vr(O + 16 * s + 4 * j, 4)} offset:{(s - 1) * 4096 + j * 1024}')
    p('s_mul_i32 s56, s8, 12288')
    p(f'v_add_u32 v{T}, s56, v2')
    p('s_lshl_b32 s56, s9, 17')
    p('s_lshl_b32 s57, s8, 15')
    p('s_add_u32 s56, s56, s57')
    p('s_lshl_b32 s57, s10, 10')
    p('s_add_u32 s56, s56, s57')
    p('s_add_u32 s56, s56, s46')
    p('s_waitcnt lgkmcnt(0)')
    p('s_barrier')
    for s in range(1, 4):
        for j in range(4):
            p(f'ds_read_b128 {vr(O + 16 * s + 4 * j, 4)}, v{T} offset:{(s - 1) * 4096 + j * 1024}')
    for s in range(1, 4):
        for r in range(16):
            p(f'v_add_f32 v{O + r}, v{O + r}, v{O + 16 * s + r}')
    p(f'v_add_f32 v{T}, |v{O}|, |v{O + 1}|')
    p(f'v_add_f32 v{T + 1}, |v{O + 2}|, |v{O + 3}|')
    for r in range(4, 16):
        p(f'v_add_f32 v{T + r % 2}, v{T + r % 2}, |v{O + r}|')
    p(f'v_add_f32 v{T}, v{T}, v{T + 1}')
    p(f'v_mov_b32 v{T + 1}, 0x7f800000')
    p(f'v_cmp_lt_f32 vcc, v{T}, v{T + 1}')
    p('s_cmp_eq_u64 vcc, -1')
    p('s_cbranch_scc0 attn_slow')
    p.label('attn_fin')
    p(f'v_mov_b32 v{T}, v{O + 12}')
    p(f'v_mov_b32 v{T + 1}, v{O + 12}')
    p(f'v_permlane32_swap_b32 v{T}, v{T + 1}')
    p(f'v_rcp_f32 v{T}, v{T + 1}')
    for r in range(16):
        p(f'v_mul_f32 v{O + r}, v{O + r}, v{T}')
    for rq in range(4):
        o = O + 16 + 4 * (rq % 2) + 2 * (rq // 2)
        p(f'v_cvt_pk_bf16_f32 v{o}, v{O + 4 * rq}, v{O + 4 * rq + 1}')
        p(f'v_cvt_pk_bf16_f32 v{o + 1}, v{O + 4 * rq + 2}, v{O + 4 * rq + 3}')
    p(f'buffer_store_dwordx4 {vr(O + 16, 4)}, v7, s[4:7], s56 offen {SC}')
    p(f'buffer_store_dwordx4 {vr(O + 20, 4)}, v7, s[4:7], s56 offen offset:512 {SC}')
    stamp(p, 4)

    def sync(k, nprod, helpers=None):
        p('s_waitcnt vmcnt(0)')
        p('s_barrier')
        p('s_cmp_lg_u32 s8, 0')
        p(f's_cbranch_scc1 sy{k}_h')
        p(f's_add_u32 s56, s9, {16 * k}')
        p('s_lshl_b32 s56, s56, 7')
        p('s_add_u32 s56, s56, s50')
        p('v_mov_b32 v252, 0')
        p('v_mov_b32 v253, 1')
        p('s_mov_b64 exec, 1')
        if nprod < 16:
            p(f's_cmp_ge_u32 s10, {nprod}')
            p(f's_cbranch_scc1 sy{k}_n')
        p('buffer_atomic_add v253, v252, s[4:7], s56 offen sc1')
        p.label(f'sy{k}_n')
        p('s_mov_b32 s57, 200000')
        p.label(f'sy{k}_p')
        p('buffer_load_dword v253, v252, s[4:7], s56 offen sc1')
        p('s_sub_u32 s57, s57, 1')
        p('s_waitcnt vmcnt(0)')
        p('v_readfirstlane_b32 s58, v253')
        p('s_cmp_eq_u32 s57, 0')
        p(f's_cbranch_scc1 sy{k}_q')
        p(f's_cmp_lt_u32 s58, {nprod}')
        p(f's_cbranch_scc1 sy{k}_p')
        p.label(f'sy{k}_q')
        p('s_mov_b64 exec, -1')
        p(f's_branch sy{k}_e')
        p.label(f'sy{k}_h')
        if helpers:
            helpers()
        p.label(f'sy{k}_e')
        p('s_barrier')

    def h_w1():
        p('s_sub_u32 s56, s8, 1')
        p('s_lshl_b32 s56, s56, 14')
        p('s_mov_b32 m0, s56')
        p('s_add_u32 s56, s56, s66')
        for i in range(4):
            for j in range(4):
                p(f'buffer_load_dwordx4 v2, s[4:7], s56 offen offset:{1024 * j} lds')
            if i < 3:
                p('s_add_u32 m0, m0, 4096')
                p('s_add_u32 s56, s56, 4096')

    sync(0, 16, h_w1)
    stamp(p, 5)

    X1K = 244
    p('s_cmp_ge_u32 s10, 14')
    p('s_cbranch_scc1 w_skip')
    XB, ACC, WF = 8, 72, 88
    p('s_add_u32 s56, s55, s8')
    p('s_lshl_b32 s57, s56, 14')
    p('s_add_u32 s57, s57, s46')
    for ks in range(16):
        if ks and ks % 4 == 0:
            p('s_add_u32 s57, s57, 4096')
        p(f'buffer_load_dwordx4 {vr(XB + 4 * ks, 4)}, v2, s[4:7], s57 offen offset:{1024 * (ks % 4)} {SC}')
    p(f'v_add_u32 v5, {X_WO}, v2')
    NBW = 3

    def wrd(ks):
        return [f'ds_read_b128 {vr(WF + 16 * (ks % NBW) + 4 * nt, 4)}, v5 offset:{(ks * 4 + nt) * 1024}' for nt in range(4)]
    for x in wrd(0) + wrd(1):
        p(x)
    p('s_mov_b32 s60, 0xffff0000')
    for j in range(8):
        p(f'v_accvgpr_read_b32 v{140 + j}, a{240 + j}')
    for j in range(8):
        p(f'v_lshlrev_b32 v{ACC + 2 * j}, 16, v{140 + j}')
        p(f'v_and_b32 v{ACC + 2 * j + 1}, s60, v{140 + j}')
    p('s_mul_i32 s57, s56, 14336')
    p('s_lshl_b32 s58, s19, 11')
    p('s_add_u32 s57, s57, s58')
    p('s_add_u32 s57, s57, s47')
    p('s_lshl_b32 s58, s56, 10')
    p('s_lshl_b32 s59, s19, 7')
    p('s_add_u32 s58, s58, s59')
    p('s_add_u32 s58, s58, s48')
    p('v_lshlrev_b32 v6, 3, v3')
    for ks in range(16):
        mf = []
        for nt in range(4):
            a = vr(WF + 16 * (ks % NBW) + 4 * nt, 4) if ks < 15 else ar(224 + 4 * nt, 4)
            d = vr(ACC + 4 * nt, 4)
            mf.append(f'{MF16} {d}, {a}, {vr(XB + 4 * ks, 4)}, {d}')
        for x in interleave(mf, wrd(ks + 2) if ks + 2 < 15 else []):
            p(x)
    stamp(p, 6)
    for j in range(8):
        p(f'v_cvt_pk_bf16_f32 v{X1K + j}, v{ACC + 2 * j}, v{ACC + 2 * j + 1}')
    p(f'buffer_store_dwordx4 {vr(X1K, 4)}, v2, s[4:7], s57 offen {SC}')
    p(f'buffer_store_dwordx4 {vr(X1K + 4, 4)}, v2, s[4:7], s57 offen offset:1024 {SC}')
    for j in range(8):
        p(f'v_lshlrev_b32 v{ACC + 2 * j}, 16, v{X1K + j}')
        p(f'v_and_b32 v{ACC + 2 * j + 1}, s60, v{X1K + j}')
    p(f'v_add_f32 v8, v{ACC}, v{ACC + 1}')
    p(f'v_mul_f32 v9, v{ACC}, v{ACC}')
    p(f'v_add_f32 v10, v{ACC + 2}, v{ACC + 3}')
    p(f'v_mul_f32 v11, v{ACC + 1}, v{ACC + 1}')
    for r in range(2, 16):
        if r >= 4:
            p(f'v_add_f32 v{8 + 2 * (r % 2)}, v{8 + 2 * (r % 2)}, v{ACC + r}')
        p(f'v_fmac_f32 v{9 + 2 * (r % 2)}, v{ACC + r}, v{ACC + r}')
    p('v_add_f32 v8, v8, v10')
    p('v_add_f32 v9, v9, v11')
    allreduce_g2(p, 8, 10, 9, 11)
    p('s_mov_b64 exec, 0xffff')
    p(f'buffer_store_dwordx2 v[8:9], v6, s[4:7], s58 offen {SC}')
    p('s_mov_b64 exec, -1')
    p.label('w_skip')

    def h_cs():
        for r in range(4):
            p(f'v_mov_b32 v{8 + r}, {ONES}')
        p('s_sub_u32 s56, s8, 1')
        p('s_lshl_b32 s57, s56, 10')
        p('v_add_u32 v5, s57, v2')
        p('v_add_u32 v6, 0xc400, v5')
        NBC = 4

        def rd(ks):
            va, k2 = ('v5', ks) if ks < 7 else ('v6', ks - 7)
            return [f'ds_read_b128 {vr(24 + 12 * (ks % NBC) + 4 * i, 4)}, {va} offset:{k2 * 7168 + i * 3072}' for i in range(3)]
        for ks in range(NBC - 1):
            for x in rd(ks):
                p(x)
        for ks in range(KS):
            mf = []
            for i in range(3):
                d = vr(12 + 4 * i, 4)
                mf.append(f'{MF16} {d}, {vr(24 + 12 * (ks % NBC) + 4 * i, 4)}, v[8:11], {"0" if ks == 0 else d}')
            for x in interleave(mf, rd(ks + NBC - 1) if ks + NBC - 1 < KS else []):
                p(x)
        p('s_lshl_b32 s57, s56, 6')
        p(f's_add_u32 s57, s57, {X_MISC}')
        p('v_lshl_add_u32 v5, v4, 4, s57')
        for i in range(3):
            p(f'ds_write_b128 v5, {vr(12 + 4 * i, 4)} offset:{192 * i}')
        p('s_waitcnt lgkmcnt(0)')

    BP = 226
    p('s_mul_i32 s59, s10, 224')
    p('v_lshlrev_b32 v7, 3, v4')
    for nt in range(7):
        p(f'buffer_load_dwordx2 {vr(BP + 2 * nt, 2)}, v7, s[24:27], s59 offen offset:{32 * nt}')
    sync(1, 14, h_cs)
    stamp(p, 7)

    XB, ACC, WF = 8, 120, 176
    TM = 208
    KC = 240
    p('s_lshl_b32 s56, s9, 3')
    p('s_lshl_b32 s57, s8, 1')
    p('s_add_u32 s56, s56, s57')
    p('s_lshl_b32 s57, s56, 10')
    p('s_add_u32 s57, s57, s48')
    p('v_lshlrev_b32 v5, 3, v3')
    p('v_lshl_add_u32 v5, v4, 8, v5')
    for m in range(2):
        p(f'buffer_load_dwordx2 {vr(TM + 4 * m, 2)}, v5, s[4:7], s57 offen offset:{1024 * m} {SC}')
        p(f'buffer_load_dwordx2 {vr(TM + 4 * m + 2, 2)}, v5, s[4:7], s57 offen offset:{1024 * m + 128} {SC}')
    p('s_mul_i32 s57, s56, 14336')
    p('s_add_u32 s57, s57, s47')
    p('s_add_u32 s58, s57, 14336')

    def xld(ks):
        o = []
        if ks and ks % 4 == 0:
            o += ['s_add_u32 s57, s57, 4096', 's_add_u32 s58, s58, 4096']
        o.append(f'buffer_load_dwordx4 {vr(XB + 4 * ks, 4)}, v2, s[4:7], s57 offen offset:{1024 * (ks % 4)} {SC}')
        o.append(f'buffer_load_dwordx4 {vr(XB + 56 + 4 * ks, 4)}, v2, s[4:7], s58 offen offset:{1024 * (ks % 4)} {SC}')
        return o
    XD = 7
    for ks in range(XD):
        for x in xld(ks):
            p(x)
    p('v_lshlrev_b32 v5, 4, v4')
    p(f'v_add_u32 v5, {X_MISC}, v5')
    for nt in range(7):
        p(f'ds_read_b128 {vr(ACC + 4 * nt, 4)}, v5 offset:{64 * nt}')
    p('v_add_u32 v6, 0xc400, v2')
    p('v_cmp_eq_u32 vcc, 3, v4')
    for m in range(2):
        b = TM + 4 * m
        p(f'v_cndmask_b32 v{b + 2}, v{b + 2}, 0, vcc')
        p(f'v_cndmask_b32 v{b + 3}, v{b + 3}, 0, vcc')
        p(f'v_add_f32 v{b}, v{b}, v{b + 2}')
        p(f'v_add_f32 v{b + 1}, v{b + 1}, v{b + 3}')
        allreduce_g2(p, b, b + 2, b + 1, b + 3)
        var_from(p, b, b + 1, b + 2, b + 3)
        p(f'v_rsq_f32 v{b}, v{b + 3}')
        p(f'v_mul_f32 v{252 + m}, v{b + 3}, v{b}')
    C0 = -2.0 * math.sqrt(2.0 / math.pi) * math.log2(math.e)
    for m in range(2):
        b = TM + 4 * m
        p(f'v_mul_f32 v{KC + 2 * m}, {f32(C0)}, v{b}')
        p(f'v_mul_f32 v{b + 1}, v{b}, v{b}')
        p(f'v_mul_f32 v{b + 1}, {f32(0.044715)}, v{b + 1}')
        p(f'v_mul_f32 v{KC + 2 * m + 1}, v{b + 1}, v{KC + 2 * m}')
    p('s_mov_b32 s60, 0xffff0000')
    for j in range(14):
        for h in range(2):
            i = 2 * j + h
            t = TM + 8 + (i % 4)
            if h == 0:
                p(f'v_lshlrev_b32 v{t}, 16, v{BP + j}')
            else:
                p(f'v_and_b32 v{t}, s60, v{BP + j}')
            p(f'v_mul_f32 v{ACC + 28 + i}, v{TM + 6}, v{ACC + i}')
            p(f'v_mul_f32 v{ACC + i}, v{TM + 2}, v{ACC + i}')
            p(f'v_fma_f32 v{ACC + 28 + i}, v{t}, v253, -v{ACC + 28 + i}')
            p(f'v_fma_f32 v{ACC + i}, v{t}, v252, -v{ACC + i}')
    p('s_lshr_b32 s59, s10, 1')
    p('s_mul_i32 s59, s59, 7168')
    p(f's_mul_i32 s61, s56, {KB * 1024}')
    p('s_add_u32 s59, s59, s61')
    p('s_add_u32 s59, s59, s49')
    p('s_and_b32 s61, s10, 1')
    p('s_mul_i32 s62, s61, 3072')
    p('s_add_u32 s62, s62, s59')
    p(f's_add_u32 s63, s62, {KB * 1024}')
    p('s_lshl_b32 s61, s61, 3')
    p('s_add_u32 s61, s61, s59')
    p('s_add_u32 s64, s61, 6144')
    p(f's_add_u32 s65, s64, {KB * 1024}')

    def f1_stream(tiles, with_x):
        n = len(tiles)
        nb = 32 // (4 * n) if n > 1 else 4
        nb = min(nb, 4)

        def rd(ks):
            va, k2 = ('v2', ks) if ks < 7 else ('v6', ks - 7)
            return [f'ds_read_b128 {vr(WF + 4 * n * (ks % nb) + 4 * i, 4)}, {va} offset:{k2 * 7168 + t * 1024}'
                    for i, t in enumerate(tiles)]
        head = []
        for ks in range(nb - 1):
            head += rd(ks)
        out = []
        for ks in range(KS):
            mf = []
            for i, t in enumerate(tiles):
                for m in range(2):
                    d = vr(ACC + 28 * m + 4 * t, 4)
                    mf.append(f'{MF16} {d}, {vr(WF + 4 * n * (ks % nb) + 4 * i, 4)}, {vr(XB + 56 * m + 4 * ks, 4)}, {d}')
            sec = rd(ks + nb - 1) if ks + nb - 1 < KS else []
            if with_x and ks + XD < KS:
                sec = sec + xld(ks + XD)
            out += interleave(mf, sec)
        return head, out

    def gelu(tiles):
        o = []
        for m in range(2):
            k0, k1, sg = KC + 2 * m, KC + 2 * m + 1, 252 + m
            for t in tiles:
                a = ACC + 28 * m + 4 * t
                tt = TM + 4 * ((t + m) % 4)
                for r in range(4):
                    o.append(f'v_mul_f32 v{tt + r}, v{a + r}, v{a + r}')
                for r in range(4):
                    o.append(f'v_fma_f32 v{tt + r}, v{tt + r}, v{k1}, v{k0}')
                for r in range(4):
                    o.append(f'v_mul_f32 v{tt + r}, v{tt + r}, v{a + r}')
                for r in range(4):
                    o.append(f'v_exp_f32 v{tt + r}, v{tt + r}')
                for r in range(4):
                    o.append(f'v_fma_f32 v{tt + r}, v{tt + r}, v{sg}, v{sg}')
                for r in range(4):
                    o.append(f'v_rcp_f32 v{tt + r}, v{tt + r}')
                for r in range(4):
                    o.append(f'v_mul_f32 v{a + r}, v{a + r}, v{tt + r}')
                q = ACC + 28 * m + 8 * (t // 2) + 2 * (t % 2)
                o.append(f'v_cvt_pk_bf16_f32 v{q}, v{a}, v{a + 1}')
                o.append(f'v_cvt_pk_bf16_f32 v{q + 1}, v{a + 2}, v{a + 3}')
                if t % 2 == 1:
                    o.append(f'buffer_store_dwordx4 {vr(q - 2, 4)}, v2, s[4:7], s{62 + m} offen offset:{1024 * (t // 2)} {SC}')
                if t == 6:
                    o.append(f'buffer_store_dwordx2 {vr(q, 2)}, v2, s[4:7], s{64 + m} offen {SC}')
        return o

    h0, b0 = f1_stream([0, 1, 2, 3], True)
    for x in h0 + b0:
        p(x)
    stamp(p, 8)
    h1, b1 = f1_stream([4, 5], False)
    for x in h1:
        p(x)
    p('s_cmp_eq_u32 s11, 1')
    p('s_cbranch_scc1 f1_nq')
    p('s_and_b32 s54, s10, 7')
    p('s_mov_b32 s66, s62')
    p('s_mov_b32 s67, s63')
    p('v_mov_b32 v224, v6')
    p('v_mov_b32 v226, v240')
    p('v_mov_b32 v227, v241')
    p('v_mov_b32 v228, v242')
    p('v_mov_b32 v229, v243')
    qkv_wdma_setup(p)
    p('s_cmp_eq_u32 s54, 7')
    p('s_cbranch_scc1 f1_kv')
    qkv_wdma_init(p, False, X_WO)
    for G in range(7):
        for x in qkv_wdma(p, G, False, X_WO, 'wq'):
            p(x)
    p('s_branch f1_q2')
    p.label('f1_kv')
    qkv_wdma_init(p, True, X_WO)
    for G in range(7):
        for x in qkv_wdma(p, G, True, X_WO, 'wq'):
            p(x)
    p.label('f1_q2')
    p('s_mov_b32 s62, s66')
    p('s_mov_b32 s63, s67')
    p('v_mov_b32 v6, v224')
    p('v_mov_b32 v240, v226')
    p('v_mov_b32 v241, v227')
    p('v_mov_b32 v242, v228')
    p('v_mov_b32 v243, v229')
    p.label('f1_nq')
    for x in interleave(b1, gelu([0, 1, 2, 3])):
        p(x)
    h2, b2 = f1_stream([6], False)
    for x in h2:
        p(x)
    for x in interleave(b2, gelu([4, 5]), start=2):
        p(x)
    stamp(p, 9)
    for x in gelu([6]):
        p(x)
    p('s_lshl_b32 s59, s19, 7')
    p('v_lshlrev_b32 v7, 3, v4')
    for nt in range(4):
        p(f'buffer_load_dwordx2 {vr(236 + 2 * nt, 2)}, v7, s[28:31], s59 offen offset:{32 * nt}')
    sync(2, 16)
    stamp(p, 10)

    p('s_cmp_ge_u32 s10, 14')
    p('s_cbranch_scc1 f2_skip')
    ACC, HR = 8, 72
    RB = 10
    HD = 5
    p('s_mul_i32 s56, s8, 14336')
    p(f's_mul_i32 s57, s55, {KB * 1024}')
    p('s_add_u32 s56, s56, s57')
    p('s_add_u32 s56, s56, s49')
    for s in range(4):
        p(f's_add_u32 s57, s8, {s}')
        p('s_and_b32 s57, s57, 3')
        p(f's_mul_i32 s57, s57, {KB * 1024}')
        p(f'v_add_u32 v{232 + s}, s57, v2')

    def hld(i):
        o = []
        if i and i % 4 == 0:
            o.append('s_add_u32 s56, s56, 4096')
        for s in range(4):
            o.append(f'buffer_load_dwordx4 {vr(HR + 16 * (i % RB) + 4 * s, 4)}, v{232 + s}, s[4:7], s56 offen offset:{1024 * (i % 4)} {SC}')
        return o
    for i in range(HD):
        for x in hld(i):
            p(x)
    p('s_mov_b32 s60, 0xffff0000')
    for j in range(8):
        p(f'v_lshlrev_b32 v{ACC + 2 * j}, 16, v{X1K + j}')
        p(f'v_and_b32 v{ACC + 2 * j + 1}, s60, v{X1K + j}')
        p(f'v_lshlrev_b32 v{ACC + 16 + 2 * j}, 16, v{236 + j}')
        p(f'v_and_b32 v{ACC + 17 + 2 * j}, s60, v{236 + j}')
    for r in range(16):
        p(f'v_add_f32 v{ACC + r}, v{ACC + r}, v{ACC + 16 + r}')
    for i in range(14):
        mf = []
        for s in range(4):
            for nt in range(4):
                d = vr(ACC + 16 * s + 4 * nt, 4)
                c = '0' if (i == 0 and s > 0) else d
                mf.append(f'{MF16} {d}, {ar(16 * i + 4 * nt, 4)}, {vr(HR + 16 * (i % RB) + 4 * s, 4)}, {c}')
        for x in interleave(mf, hld(i + HD) if i + HD < 14 else []):
            p(x)
    stamp(p, 11)
    for s in range(1, 4):
        p(f's_add_u32 s56, s8, {s}')
        p('s_and_b32 s56, s56, 3')
        p('s_mul_i32 s56, s56, 12288')
        p('v_add_u32 v5, s56, v2')
        for j in range(4):
            p(f'ds_write_b128 v5, {vr(ACC + 16 * s + 4 * j, 4)} offset:{(s - 1) * 4096 + j * 1024}')
    p('s_mul_i32 s56, s8, 12288')
    p('v_add_u32 v5, s56, v2')
    p('v_lshrrev_b32 v6, 1, v4')
    p('v_and_b32 v7, 1, v4')
    p('v_lshl_or_b32 v6, v7, 1, v6')
    p('v_mul_u32_u24 v7, 896, v3')
    p('v_lshl_add_u32 v7, v6, 4, v7')
    p('v_lshlrev_b32 v6, 8, v6')
    p('v_lshl_add_u32 v6, v3, 4, v6')
    p('s_add_u32 s57, s68, s17')
    p('s_add_u32 s58, s55, s8')
    p('s_mul_i32 s58, s58, 14336')
    p('s_lshl_b32 s59, s19, 11')
    p('s_add_u32 s58, s58, s59')
    p(f's_add_u32 s58, s58, {WS_X2N}')
    p('s_waitcnt lgkmcnt(0)')
    p('s_barrier')
    for s in range(1, 4):
        for j in range(4):
            p(f'ds_read_b128 {vr(ACC + 16 * s + 4 * j, 4)}, v5 offset:{(s - 1) * 4096 + j * 1024}')
    for s in range(1, 4):
        for r in range(16):
            p(f'v_add_f32 v{ACC + r}, v{ACC + r}, v{ACC + 16 * s + r}')
    for j in range(8):
        p(f'v_cvt_pk_bf16_f32 v{72 + j}, v{ACC + 2 * j}, v{ACC + 2 * j + 1}')
    for pp in range(2):
        p(f'v_permlane16_swap_b32 v{72 + 4 * pp}, v{74 + 4 * pp}')
        p(f'v_permlane16_swap_b32 v{73 + 4 * pp}, v{75 + 4 * pp}')
    p('s_cmp_eq_u32 s11, 1')
    p('s_cbranch_scc1 f2_out')
    for pp in range(2):
        p(f'buffer_store_dwordx4 {vr(72 + 4 * pp, 4)}, v6, s[4:7], s58 offen offset:{1024 * pp} {SC}')
    p.label('f2_out')
    for pp in range(2):
        p(f'buffer_store_dwordx4 {vr(72 + 4 * pp, 4)}, v7, s[20:23], s57 offen offset:{64 * pp}')
    p.label('f2_skip')
    p('s_cmp_eq_u32 s11, 1')
    p('s_cbranch_scc1 x_fin')
    sync(3, 14)
    stamp(p, 14)

    p(f's_mov_b32 s51, {LAY[1]["QF"]}')
    p(f's_mov_b32 s52, {LAY[1]["KV"]}')
    p('s_lshr_b32 s53, s10, 3')
    p('s_lshl_b32 s53, s53, 2')
    p('s_lshl_b32 s56, s9, 3')
    p('s_add_u32 s53, s53, s56')
    p('s_add_u32 s53, s53, s8')
    p('s_and_b32 s54, s10, 7')
    XR = 128
    p('s_mul_i32 s56, s53, 14336')
    p(f's_add_u32 s56, s56, {WS_X2N}')
    for ks in range(KS):
        if ks and ks % 4 == 0:
            p('s_add_u32 s56, s56, 4096')
        p(f'buffer_load_dwordx4 {vr(XR + 4 * ks, 4)}, v2, s[4:7], s56 offen offset:{1024 * (ks % 4)} {SC}')
    p('s_cmp_eq_u32 s54, 7')
    p('s_cbranch_scc1 xq_kv')
    qkv_core(p, False, False, X_WO, X_MISC, XR)
    p('s_branch x_fin')
    p.label('xq_kv')
    qkv_core(p, True, False, X_WO, X_MISC, XR)
    p.label('x_fin')
    endpgm(p)
    p.label('x_end')
    p('s_endpgm')

    p.label('attn_slow')
    p('s_mov_b64 exec, s[62:63]')
    p(f'v_mov_b32 v{Q + 6}, 0')
    p(f'v_mov_b32 v{Q + 7}, 0')
    p('s_mov_b64 exec, -1')
    p(f'v_mov_b32 v{T + 8}, 0xff800000')
    p('s_mov_b32 s58, s45')
    p('s_mov_b32 s57, 64')
    p.label('attn_slow1')
    p(f'buffer_load_dwordx4 {vr(KVR, 4)}, v2, s[4:7], s58 offen')
    p(f'buffer_load_dwordx4 {vr(KVR + 4, 4)}, v2, s[4:7], s58 offen offset:1024')
    p('s_add_u32 s58, s58, 4096')
    p(f'{MF32} {vr(SB, 16)}, {vr(KVR, 4)}, {vr(Q, 4)}, 0')
    p(f'{MF32} {vr(SB, 16)}, {vr(KVR + 4, 4)}, {vr(Q + 4, 4)}, {vr(SB, 16)}')
    for x in tile_max_ops(SB, T, T + 1):
        p(x)
    p(f'v_max_f32 v{T + 8}, v{T + 8}, v{T}')
    p('s_sub_u32 s57, s57, 1')
    p('s_cmp_lg_u32 s57, 0')
    p('s_cbranch_scc1 attn_slow1')
    neg_max([(Q, T + 8, T + 1, T + 2)])
    for r in range(16):
        p(f'v_mov_b32 v{O + r}, 0')
    p('s_mov_b32 s58, s45')
    p('s_mov_b32 s57, 64')
    p.label('attn_slow2')
    for j in range(4):
        for x in kvld(0, j):
            p(x)
    p(f'{MF32} {vr(SB, 16)}, {vr(KVR, 4)}, {vr(Q, 4)}, 0')
    p(f'{MF32} {vr(SB, 16)}, {vr(KVR + 4, 4)}, {vr(Q + 4, 4)}, {vr(SB, 16)}')
    for r in range(16):
        p(f'v_exp_f32 v{SB + r}, v{SB + r}')
    for r in range(8):
        p(f'v_cvt_pk_bf16_f32 v{PB + r}, v{SB + 2 * r}, v{SB + 2 * r + 1}')
    p(f'{MF32} {vr(O, 16)}, {vr(KVR + 8, 4)}, {vr(PB, 4)}, {vr(O, 16)}')
    p(f'{MF32} {vr(O, 16)}, {vr(KVR + 12, 4)}, {vr(PB + 4, 4)}, {vr(O, 16)}')
    p('s_sub_u32 s57, s57, 1')
    p('s_cmp_lg_u32 s57, 0')
    p('s_cbranch_scc1 attn_slow2')
    p('s_branch attn_fin')
    p('.p2align 10')
    p.label('x_code_end')
    p('s_endpgm')
    for k in ('x1_kernel', 'x2_kernel'):
        kernels.append((k, 512, 256, 102))


def main():
    p = Prog()
    gen_qkv1(p)
    gen_x(p)
    p.finish()
    launches = [('qkv1_kernel', 256, 256, L1_LDS), ('x1_kernel', 256, 256, X_LDS), ('x2_kernel', 256, 256, X_LDS)]
    out = ['; generated by gen/gen2.py (hand-written generator); see that script for the data layouts']
    for (k, g, b, l) in launches:
        out.append(f'; @launch kernel={k} grid=({g},1,1) block=({b},1,1) lds={l}')
    out.append('.amdgcn_target "amdgcn-amd-amdhsa--gfx950"')
    out.append('.text')
    out.append(p.text())
    out.append('.section .rodata,"a"')
    for (k, nv, acc, ns) in kernels:
        out.append('.p2align 6')
        out.append(f'.amdhsa_kernel {k}')
        out.append(f'  .amdhsa_next_free_vgpr {nv}')
        out.append(f'  .amdhsa_next_free_sgpr {ns}')
        out.append(f'  .amdhsa_accum_offset {acc}')
        out.append('  .amdhsa_group_segment_fixed_size 0')
        out.append('  .amdhsa_kernarg_size 104')
        out.append('  .amdhsa_user_sgpr_count 2')
        out.append('  .amdhsa_user_sgpr_kernarg_segment_ptr 1')
        out.append('  .amdhsa_system_sgpr_workgroup_id_x 1')
        out.append('.end_amdhsa_kernel')
    dst = sys.argv[1] if len(sys.argv) > 1 else f'cdna_kernels/{NAME}.s'
    open(dst, 'w').write('\n'.join(out) + '\n')
    json.dump(dict(V=2, WO=WS_WO, W1=WS_W1, W2=WS_W2, X2=WS_X2, X2N=WS_X2N, LAY=LAY, END=WS_END),
              open('layout.json', 'w'))
    print('wrote', dst, 'ws bytes', WS_END, 'max regs', p.max_regs(), 'instrs', len(p.ins))


if __name__ == '__main__':
    main()
```

```python
import json
import math
import os
import struct
import sys
from asmlib import Prog, vr, sr, ar, interleave

NAME = 'interleave_layers__grouped_kv_mqa__dense_activation_gelu__prompt'
S, D, H, DH, F = 2048, 448, 16, 28, 1792
KS = 14
KB = 56
STAMP = int(os.environ.get('STAMP', '0'))
WS_STAMP = 200 << 20
CODEPF = int(os.environ.get('CODEPF', '1'))


def f32(x):
    return '0x%08x' % struct.unpack('<I', struct.pack('<f', x))[0]


_off = 0


def alloc(n):
    global _off
    o = _off
    _off += (n + 4095) // 4096 * 4096
    return o


ACT = 128 * KS * 1024
WS_WO = alloc(7 * 16 * 4096)
WS_W1 = alloc(16 * KS * 7168 + 4096)
WS_W2 = alloc(7 * KB * 4096)
WS_X2 = alloc(ACT)
WS_X2N = alloc(ACT)
WS_CNT = alloc(2 * 4 * 16 * 128)
LAY = []
for L in range(2):
    LAY.append(dict(QF=alloc(64 * 16 * 2048), KV=alloc(64 * 4096), OF=alloc(128 * 16 * 1024), X1F=alloc(ACT),
                    ST1=alloc(128 * 1024), HF=alloc(128 * KB * 1024), CNT=WS_CNT + L * 8192))
WS_END = _off

K_AX, K_WQ, K_WK, K_WV, K_WO, K_BX, K_W1, K_B1, K_W2, K_B2, K_OUT, K_DBG, K_WS = [8 * i for i in range(13)]
QSCALE = DH ** -0.5 * math.log2(math.e)
MF16 = 'v_mfma_f32_16x16x32_bf16'
MF32 = 'v_mfma_f32_32x32x16_bf16'
ONES = '0x3f803f80'

kernels = []
LAUNCH_ID = {'qkv1_kernel': 0, 'x1_kernel': 1, 'x2_kernel': 2}
NST = 16


_dbg = 0


def stamp(p, i):
    if STAMP:
        p('s_memrealtime s[100:101]')
        p('s_waitcnt lgkmcnt(0)')
        p(f'v_writelane_b32 v255, s100, {i}')


def endpgm(p):
    if STAMP:
        p('s_waitcnt vmcnt(0)')
        stamp(p, 15)
        p(f's_load_dwordx2 s[96:97], s[0:1], {K_WS}')
        p('s_lshl_b32 s98, s2, 2')
        p('s_add_u32 s98, s98, s8')
        p('s_lshl_b32 s98, s98, 6')
        p('s_lshl_b32 s99, s3, 17')
        p('s_add_u32 s98, s98, s99')
        p(f's_add_u32 s98, s98, {WS_STAMP}')
        p('s_mov_b64 exec, -1')
        p('v_and_b32 v254, 63, v0')
        p('v_lshl_add_u32 v254, v254, 2, s98')
        p('s_mov_b64 exec, 0xffff')
        p('global_store_dword v254, v255, s[96:97]')
        if STAMP == 2:
            global _dbg
            _dbg += 1
            p('s_lshl_b32 s98, s2, 2')
            p('s_add_u32 s98, s98, s8')
            p('s_cmp_lg_u32 s98, 161')
            p(f's_cbranch_scc1 dbg_skip{_dbg}')
            p(f's_load_dwordx2 s[96:97], s[0:1], {K_DBG}')
            p('s_sub_u32 s99, 2, s3')
            p('s_lshl_b32 s99, s99, 9')
            p('s_waitcnt lgkmcnt(0)')
            p('s_add_u32 s96, s96, s99')
            p('s_addc_u32 s97, s97, 0')
            p('s_mov_b64 exec, -1')
            p('v_mov_b32 v254, 0x1000')
            tabs = {0: {0: 0, 2: 1, 15: 2}, 1: {0: 3, 2: 4, 3: 5, 5: 6, 7: 7, 10: 8, 14: 9, 15: 10}, 2: {0: 11, 3: 12, 7: 13, 10: 14, 15: 15}}
            for L, tab in tabs.items():
                p(f's_cmp_lg_u32 s3, {L}')
                p(f's_cbranch_scc1 dbg_n{_dbg}_{L}')
                for ln, slot in tab.items():
                    p(f's_mov_b32 s98, {4 * slot}')
                    p(f'v_writelane_b32 v254, s98, {ln}')
                p.label(f'dbg_n{_dbg}_{L}')
            p('v_cmp_gt_u32 vcc, 64, v254')
            p('s_and_b64 exec, exec, vcc')
            p('global_store_dword v254, v255, s[96:97]')
            p.label(f'dbg_skip{_dbg}')
    p('s_endpgm')


def srd(p, base, ptr, nbytes):
    p(f's_mov_b32 s{base}, s{ptr}')
    p(f's_and_b32 s{base + 1}, s{ptr + 1}, 0xffff')
    p(f's_mov_b32 s{base + 2}, {nbytes}')
    p(f's_mov_b32 s{base + 3}, 0x20000')


def entry(p, label):
    p('.p2align 8')
    p(f'.globl {label}')
    p(f'.type {label},@function')
    p.label(label)
    if STAMP:
        p(f's_mov_b32 s3, {LAUNCH_ID[label]}')
        p('v_mov_b32 v255, 0')
        stamp(p, 0)


def lane_setup(p):
    p('v_lshrrev_b32 v1, 6, v0')
    p('v_readfirstlane_b32 s8, v1')
    p('v_and_b32 v1, 63, v0')
    p('v_lshlrev_b32 v2, 4, v1')
    p('v_and_b32 v3, 15, v1')
    p('v_lshrrev_b32 v4, 4, v1')
    p('s_and_b32 s9, s2, 7')
    p('s_lshl_b32 s9, s9, 1')
    p('s_lshr_b32 s10, s2, 7')
    p('s_add_u32 s9, s9, s10')
    p('s_bfe_u32 s10, s2, 0x40003')


def allreduce_g(p, v, t, op='v_add_f32'):
    p(f'v_mov_b32 v{t}, v{v}')
    p(f'v_permlane16_swap_b32 v{v}, v{t}')
    p(f'{op} v{v}, v{v}, v{t}')
    p(f'v_mov_b32 v{t}, v{v}')
    p(f'v_permlane32_swap_b32 v{v}, v{t}')
    p(f'{op} v{v}, v{v}, v{t}')


def allreduce_g2(p, a, ta, b, tb):
    for sw in ('v_permlane16_swap_b32', 'v_permlane32_swap_b32'):
        p(f'v_mov_b32 v{ta}, v{a}')
        p(f'v_mov_b32 v{tb}, v{b}')
        p(f'{sw} v{a}, v{ta}')
        p(f'{sw} v{b}, v{tb}')
        p(f'v_add_f32 v{a}, v{a}, v{ta}')
        p(f'v_add_f32 v{b}, v{b}, v{tb}')


def var_from(p, s1, s2, mu, t):
    p(f'v_mul_f32 v{mu}, {f32(1.0 / D)}, v{s1}')
    p(f'v_mul_f32 v{t}, {f32(1.0 / D)}, v{s2}')
    p(f'v_fma_f32 v{t}, -v{mu}, v{mu}, v{t}')
    p(f'v_max_f32 v{t}, 0, v{t}')
    p(f'v_add_f32 v{t}, {f32(1e-5)}, v{t}')


QW_E, QW_O = 240, 241
QK_E, QK_O = 242, 243


def qkv_wdma_setup(p):
    p('v_lshrrev_b32 v5, 3, v1')
    p('v_and_b32 v6, 7, v1')
    p('v_bfe_u32 v7, v1, 4, 1')
    p('v_lshlrev_b32 v7, 1, v7')
    p('v_xor_b32 v6, v6, v7')
    p('v_xor_b32 v7, 4, v6')
    p('s_lshl_b32 s56, s8, 4')
    p('v_add_u32 v5, s56, v5')
    p(f'v_mul_u32_u24 v{QW_E}, 896, v5')
    p(f'v_add_u32 v{QW_O}, {8 * 896}, v{QW_E}')
    p(f'v_lshl_add_u32 v{QW_E}, v6, 4, v{QW_E}')
    p(f'v_lshl_add_u32 v{QW_O}, v7, 4, v{QW_O}')
    p('v_and_b32 v6, 3, v6')
    p('v_lshlrev_b32 v6, 4, v6')
    p('v_min_u32 v6, 40, v6')
    p(f'v_mad_u32_u24 v{QK_E}, v5, 56, v6')
    p(f'v_add_u32 v{QK_O}, {8 * 56}, v{QK_E}')


def qkv_wdma(p, G, kv, wbase, tag):
    out = []
    if not kv:
        out += ['s_mov_b32 m0, s58', 's_add_u32 s59, s58, 1024',
                f'buffer_load_dwordx4 v{QW_E}, s[32:35], s57 offen lds ; tag={tag}',
                's_mov_b32 m0, s59', 's_add_u32 s58, s58, 8192',
                f'buffer_load_dwordx4 v{QW_O}, s[32:35], s57 offen lds ; tag={tag}',
                f's_add_u32 s57, s57, {64 * 896}']
    else:
        out += ['s_mov_b32 m0, s58', 's_mov_b64 exec, s[60:61]',
                f'buffer_load_dwordx4 v{QK_E}, s[36:39], s57 offen lds ; tag={tag}',
                's_mov_b64 exec, s[62:63]',
                f'buffer_load_dwordx4 v{QK_E}, s[40:43], s57 offen lds ; tag={tag}',
                's_add_u32 m0, m0, 1024', 's_add_u32 s58, s58, 8192',
                f'buffer_load_dwordx4 v{QK_O}, s[36:39], s57 offen lds ; tag={tag}',
                's_mov_b64 exec, s[60:61]',
                f'buffer_load_dwordx4 v{QK_O}, s[40:43], s57 offen lds ; tag={tag}',
                's_mov_b64 exec, -1',
                f's_add_u32 s57, s57, {64 * 56}']
    return out


def qkv_wdma_init(p, kv, wbase):
    if kv:
        p('s_mov_b32 s57, 0')
        p('s_mov_b32 s60, 0x0f0f0f0f')
        p('s_mov_b32 s61, 0x0f0f0f0f')
        p('s_mov_b32 s62, 0xf0f0f0f0')
        p('s_mov_b32 s63, 0xf0f0f0f0')
    else:
        p('s_lshl_b32 s57, s54, 7')
    p('s_lshl_b32 s58, s8, 11')
    p(f's_add_u32 s58, s58, {wbase}')


def qkv_core(p, kv, lds_x, wbase, misc, XR, pre_group=None, stfl=''):
    ACC, SUM, GRM, CSM = 8, 24, 28, 32
    ON = 36
    WF = 40
    WA = 88
    SA = 96
    CS = 100
    T = 116
    for r in range(4):
        p(f'v_mov_b32 v{ON + r}, {ONES}')
    p('v_lshrrev_b32 v5, 2, v3')
    p('v_lshlrev_b32 v6, 7, v5')
    p('v_lshl_add_u32 v6, v4, 10, v6')
    p('v_and_b32 v7, 3, v1')
    p('v_lshl_add_u32 v6, v7, 3, v6')
    p(f'v_add_u32 v6, {wbase}, v6')
    p('v_lshrrev_b32 v5, 1, v5')
    p('v_and_b32 v7, 1, v4')
    p('v_lshl_or_b32 v5, v7, 1, v5')
    for nt in range(4):
        p(f'v_xor_b32 v7, {nt}, v5')
        p(f'v_lshl_add_u32 v{WA + nt}, v7, 5, v6')
    p('v_xor_b32 v7, s8, v5')
    p(f'v_lshl_add_u32 v{WA + 4}, v7, 5, v6')
    if not kv:
        p('s_lshr_b32 s64, s53, 1')
        p('s_lshl_b32 s64, s64, 15')
        p('s_add_u32 s64, s64, s51')
        p('s_and_b32 s65, s53, 1')
        p('s_lshl_b32 s65, s65, 8')
        p('s_add_u32 s64, s64, s65')
        p('s_lshl_b32 s65, s54, 4')
        for nt in range(4):
            p(f'v_add_u32 v5, s65, v4')
            if nt:
                p(f'v_add_u32 v5, {4 * nt}, v5')
            p('v_mul_u32_u24 v6, 147, v5')
            p('v_lshrrev_b32 v6, 10, v6')
            p('v_mul_u32_u24 v7, 7, v6')
            p('v_sub_u32 v5, v5, v7')
            p('v_lshlrev_b32 v6, 11, v6')
            p('v_lshl_add_u32 v6, v3, 4, v6')
            p('v_lshrrev_b32 v7, 1, v5')
            p('v_lshl_add_u32 v6, v7, 9, v6')
            p('v_and_b32 v5, 1, v5')
            p(f'v_lshl_add_u32 v{SA + nt}, v5, 3, v6')
    else:
        p('s_lshr_b32 s64, s53, 1')
        p('s_lshl_b32 s64, s64, 12')
        p('s_add_u32 s64, s64, s52')
        p('s_and_b32 s65, s53, 1')
        p('s_lshl_b32 s66, s65, 8')
        p('v_lshl_add_u32 v5, v3, 4, s66')
        p('v_lshrrev_b32 v6, 1, v4')
        p('v_lshl_add_u32 v5, v6, 9, v5')
        p('v_and_b32 v7, 1, v4')
        p(f'v_lshl_add_u32 v{SA}, v7, 3, v5')
        p('v_xor_b32 v7, v7, v6')
        p(f'v_lshl_add_u32 v{SA + 1}, v7, 3, v5')
        p('s_lshl_b32 s66, s65, 10')
        p('v_and_b32 v7, 1, v4')
        p('v_lshl_add_u32 v5, v7, 9, s66')
        p('v_lshl_add_u32 v5, v6, 3, v5')
        p(f'v_lshl_add_u32 v{SA + 2}, v3, 4, v5')
        p('v_lshrrev_b32 v6, 3, v3')
        p('v_lshlrev_b32 v6, 2, v6')
        p('v_xor_b32 v6, v6, v3')
        p(f'v_lshl_add_u32 v{SA + 3}, v6, 4, v5')

    def reads(ks):
        G, s = ks // 2, ks % 2
        b = WF + 24 * (ks % 2)
        o = []
        if lds_x:
            o.append(f'ds_read_b128 {vr(b + 20, 4)}, v{244 + s} offset:{G * 8192}')
        for t in range(5):
            for hf in range(2):
                o.append(f'ds_read_b64_tr_b16 {vr(b + 4 * t + 2 * hf, 2)}, v{WA + t} offset:{G * 8192 + s * 4096 + hf * 512}')
        return o

    def mfmas(ks):
        b = WF + 24 * (ks % 2)
        x = vr(b + 20, 4) if lds_x else vr(XR + 4 * ks, 4)
        o = []

        def c(r):
            return '0' if ks == 0 else vr(r, 4)
        o.append(f'{MF16} {vr(SUM, 4)}, {vr(ON, 4)}, {x}, {c(SUM)}')
        o.append(f'{MF16} {vr(GRM, 4)}, {x}, {x}, {c(GRM)}')
        for nt in range(4):
            a, bb = vr(b + 4 * nt, 4), x
            if kv and nt >= 2:
                a, bb = bb, a
            o.append(f'{MF16} {vr(ACC + 4 * nt, 4)}, {a}, {bb}, {c(ACC + 4 * nt)}')
        o.append(f'{MF16} {vr(CSM, 4)}, {vr(b + 16, 4)}, {vr(ON, 4)}, {c(CSM)}')
        return o

    if pre_group:
        pre_group(0)
    for t in reads(0):
        p(t)
    for ks in range(KS):
        nxt = []
        if ks + 1 < KS:
            if (ks + 1) % 2 == 0 and pre_group:
                pre_group((ks + 1) // 2)
            nxt = reads(ks + 1)
        for t in interleave(mfmas(ks), nxt):
            p(t)
    stamp(p, 12)
    p('s_lshl_b32 s65, s8, 6')
    p(f's_add_u32 s65, s65, {misc}')
    p('v_lshl_add_u32 v5, v4, 4, s65')
    p(f'ds_write_b128 v5, {vr(CSM, 4)}')
    p('v_and_b32 v6, 3, v1')
    p('v_cmp_eq_u32 vcc, 1, v6')
    p(f'v_cndmask_b32 v{T}, v{GRM}, v{GRM + 1}, vcc')
    p('v_cmp_eq_u32 vcc, 2, v6')
    p(f'v_cndmask_b32 v{T}, v{T}, v{GRM + 2}, vcc')
    p('v_cmp_eq_u32 vcc, 3, v6')
    p(f'v_cndmask_b32 v{T}, v{T}, v{GRM + 3}, vcc')
    p('v_lshrrev_b32 v6, 2, v3')
    p('v_cmp_eq_u32 vcc, v6, v4')
    p(f'v_cndmask_b32 v{T}, 0, v{T}, vcc')
    p('s_waitcnt lgkmcnt(0)')
    p('s_barrier')
    p(f'v_lshlrev_b32 v5, 4, v4')
    p(f'v_add_u32 v5, {misc}, v5')
    for nt in range(2 if kv else 4):
        p(f'ds_read_b128 {vr(CS + 4 * nt, 4)}, v5 offset:{64 * nt}')
    if kv:
        p('v_lshlrev_b32 v5, 2, v3')
        p(f'v_add_u32 v5, {misc}, v5')
        p(f'ds_read_b32 v{CS + 8}, v5 offset:128')
        p(f'ds_read_b32 v{CS + 9}, v5 offset:192')
    allreduce_g(p, T, T + 1)
    MU, RS = T + 2, T + 3
    var_from(p, SUM, T, MU, T + 1)
    p(f'v_rsq_f32 v{RS}, v{T + 1}')
    if not kv:
        p(f'v_mul_f32 v{RS}, {f32(QSCALE)}, v{RS}')
        for nt in range(4):
            a = ACC + 4 * nt
            for r in range(4):
                p(f'v_fma_f32 v{a + r}, -v{MU}, v{CS + 4 * nt + r}, v{a + r}')
            for r in range(4):
                p(f'v_mul_f32 v{a + r}, v{a + r}, v{RS}')
            p(f'v_cvt_pk_bf16_f32 v{a}, v{a}, v{a + 1}')
            p(f'v_cvt_pk_bf16_f32 v{a + 1}, v{a + 2}, v{a + 3}')
            p(f'buffer_store_dwordx2 {vr(a, 2)}, v{SA + nt}, s[4:7], s64 offen {stfl}')
    else:
        p('s_lshl_b32 s65, s8, 7')
        p(f's_add_u32 s65, s65, {misc + 256}')
        p('v_lshl_add_u32 v5, v3, 2, s65')
        p(f'ds_write_b32 v5, v{MU}')
        p(f'ds_write_b32 v5, v{RS} offset:64')
        p('v_lshl_add_u32 v5, v4, 4, s65')
        p('s_waitcnt lgkmcnt(0)')
        p(f'ds_read_b128 {vr(WF, 4)}, v5')
        p(f'ds_read_b128 {vr(WF + 4, 4)}, v5 offset:64')
        for nt in range(2):
            a = ACC + 4 * nt
            for r in range(4):
                p(f'v_fma_f32 v{a + r}, -v{MU}, v{CS + 4 * nt + r}, v{a + r}')
            for r in range(4):
                p(f'v_mul_f32 v{a + r}, v{a + r}, v{RS}')
            p(f'v_cvt_pk_bf16_f32 v{a}, v{a}, v{a + 1}')
            p(f'v_cvt_pk_bf16_f32 v{a + 1}, v{a + 2}, v{a + 3}')
            if nt == 1:
                p('v_cmp_eq_u32 vcc, 2, v4')
                p(f'v_mov_b32 v6, 0x3f80')
                p(f'v_cndmask_b32 v{a}, v{a}, v{ON}, vcc')
                p(f'v_cndmask_b32 v{a + 1}, v{a + 1}, v6, vcc')
            p(f'buffer_store_dwordx2 {vr(a, 2)}, v{SA + nt}, s[4:7], s64 offen offset:{1024 * nt} {stfl}')
        for nt in (2, 3):
            a = ACC + 4 * nt
            for r in range(4):
                p(f'v_fma_f32 v{a + r}, -v{WF + r}, v{CS + 8 + nt - 2}, v{a + r}')
            for r in range(4):
                p(f'v_mul_f32 v{a + r}, v{a + r}, v{WF + 4 + r}')
            p(f'v_cvt_pk_bf16_f32 v{a}, v{a}, v{a + 1}')
            p(f'v_cvt_pk_bf16_f32 v{a + 1}, v{a + 2}, v{a + 3}')
            if nt == 3:
                p('v_cmp_eq_u32 vcc, 8, v3')
                p(f'v_cndmask_b32 v6, 0, v{ON}, vcc')
                p('v_lshrrev_b32 v7, 2, v3')
                p('v_cmp_eq_u32 vcc, 2, v7')
                p(f'v_cndmask_b32 v{a}, v{a}, v6, vcc')
                p(f'v_cndmask_b32 v{a + 1}, v{a + 1}, v6, vcc')
            p(f'buffer_store_dwordx2 {vr(a, 2)}, v{SA + nt}, s[4:7], s64 offen offset:{2048 + 256 * (nt - 2)} {stfl}')


L1_X = 57344
L1_PREP = 114688
L1_MISC = 131072
L1_LDS = L1_MISC + 1024


def gen_qkv1(p):
    entry(p, 'qkv1_kernel')
    p('s_cmp_ge_u32 s2, 256')
    p('s_cbranch_scc1 q1_end')
    p('s_load_dwordx16 s[68:83], s[0:1], 0')
    p(f's_load_dwordx2 s[84:85], s[0:1], {K_W2}')
    p(f's_load_dwordx2 s[86:87], s[0:1], {K_WS}')
    lane_setup(p)
    p(f's_mov_b32 s51, {LAY[0]["QF"]}')
    p(f's_mov_b32 s52, {LAY[0]["KV"]}')
    p('s_lshr_b32 s53, s10, 3')
    p('s_lshl_b32 s53, s53, 2')
    p('s_lshl_b32 s56, s9, 3')
    p('s_add_u32 s53, s53, s56')
    p('s_add_u32 s53, s53, s8')
    p('s_and_b32 s54, s10, 7')
    qkv_wdma_setup(p)
    p('v_lshrrev_b32 v5, 3, v1')
    p('v_and_b32 v6, 7, v1')
    p('v_xor_b32 v6, v6, v4')
    p('v_xor_b32 v7, 4, v6')
    p('v_mul_u32_u24 v5, 896, v5')
    p('v_lshl_add_u32 v246, v6, 4, v5')
    p('v_lshl_add_u32 v247, v7, 4, v5')
    p(f'v_add_u32 v247, {8 * 896}, v247')
    p('v_lshrrev_b32 v5, 1, v3')
    p('v_xor_b32 v5, v5, v4')
    p('v_lshlrev_b32 v5, 4, v5')
    p('v_lshl_add_u32 v5, v3, 7, v5')
    p('s_lshl_b32 s56, s8, 11')
    p(f's_add_u32 s56, s56, {L1_X}')
    p('v_add_u32 v244, s56, v5')
    p('v_xor_b32 v245, 64, v244')
    p('s_mov_b32 s67, s56')
    p('s_mul_i32 s66, s53, 14336')
    srd(p, 12, 68, S * D * 2)
    srd(p, 32, 70, D * D * 2)
    srd(p, 36, 72, D * DH * 2)
    srd(p, 40, 74, D * DH * 2)
    srd(p, 4, 86, WS_END)

    def xdma(G):
        return ['s_mov_b32 m0, s55', 's_add_u32 s59, s55, 1024',
                f'buffer_load_dwordx4 v246, s[12:15], s50 offen lds ; tag=g{G}',
                's_mov_b32 m0, s59', 's_add_u32 s55, s55, 8192',
                f'buffer_load_dwordx4 v247, s[12:15], s50 offen lds ; tag=g{G}',
                's_add_u32 s50, s50, 128']

    p('s_mov_b32 s55, s67')
    p('s_mov_b32 s50, s66')

    def prep_setup():
        p('s_lshl_b32 s49, s2, 2')
        p('s_add_u32 s49, s49, s8')
        srd(p, 16, 76, D * D * 2)
        p('s_mov_b32 s44, 896')
        p('s_mov_b32 s47, 1')
        p('s_cmp_ge_u32 s49, 112')
        p('s_cbranch_scc1 q1_p1')
        p('s_lshr_b32 s45, s49, 4')
        p('s_lshl_b32 s45, s45, 7')
        p('s_and_b32 s46, s49, 15')
        p(f's_mul_i32 s46, s46, {28 * 896}')
        p('s_add_u32 s45, s45, s46')
        p(f's_add_u32 s46, s45, {16 * 896}')
        p('s_lshl_b32 s48, s49, 12')
        p(f's_add_u32 s48, s48, {WS_WO}')
        p('s_branch q1_pd')
        p.label('q1_p1')
        p('s_sub_u32 s49, s49, 112')
        p('s_cmp_ge_u32 s49, 392')
        p('s_cbranch_scc1 q1_p2')
        srd(p, 16, 80, D * F * 2)
        p('s_mov_b32 s44, 3584')
        p('s_mov_b32 s47, 2')
        p('s_mul_i32 s48, s49, 2341')
        p('s_lshr_b32 s48, s48, 16')
        p('s_mul_i32 s45, s48, 28')
        p('s_sub_u32 s49, s49, s45')
        p(f's_mul_i32 s45, s48, {32 * 3584}')
        p('s_lshl_b32 s46, s49, 7')
        p('s_add_u32 s45, s45, s46')
        p(f's_add_u32 s46, s45, {16 * 3584}')
        p('s_mul_i32 s48, s48, 7168')
        p(f's_add_u32 s48, s48, {WS_W1}')
        p('s_branch q1_pd')
        p.label('q1_p2')
        p('s_sub_u32 s49, s49, 392')
        p('s_mov_b32 s47, 0')
        p('s_mov_b32 s45, 0')
        p('s_mov_b32 s46, 0')
        p('s_mov_b32 s48, 0')
        p('s_cmp_ge_u32 s49, 392')
        p('s_cbranch_scc1 q1_pd')
        srd(p, 16, 84, F * D * 2)
        p('s_mov_b32 s47, 3')
        p('s_mul_i32 s48, s49, 9363')
        p('s_lshr_b32 s48, s48, 16')
        p('s_mul_i32 s45, s48, 7')
        p('s_sub_u32 s49, s49, s45')
        p('s_mul_i32 s45, s48, 147')
        p('s_lshr_b32 s45, s45, 10')
        p('s_mul_i32 s46, s45, 7')
        p('s_sub_u32 s46, s48, s46')
        p('s_mul_i32 s45, s45, 224')
        p('s_lshl_b32 s56, s46, 5')
        p('s_cmp_ge_u32 s46, 3')
        p('s_cselect_b32 s59, 16, 0')
        p('s_add_u32 s56, s56, s59')
        p('s_cmp_eq_u32 s46, 6')
        p('s_cselect_b32 s56, 96, s56')
        p('s_cselect_b32 s59, 112, 16')
        p('s_add_u32 s45, s45, s56')
        p('s_add_u32 s46, s45, s59')
        p('s_mul_i32 s45, s45, 896')
        p('s_mul_i32 s46, s46, 896')
        p('s_lshl_b32 s56, s49, 7')
        p('s_add_u32 s45, s45, s56')
        p('s_add_u32 s46, s46, s56')
        p(f's_mul_i32 s56, s49, {KB * 4096}')
        p('s_lshl_b32 s48, s48, 12')
        p('s_add_u32 s48, s48, s56')
        p(f's_add_u32 s48, s48, {WS_W2}')
        p.label('q1_pd')
        p('v_lshrrev_b32 v5, 3, v1')
        p('v_mul_lo_u32 v5, v5, s44')
        p('v_and_b32 v6, 7, v1')
        p('v_lshlrev_b32 v7, 1, v4')
        p('v_xor_b32 v6, v6, v7')
        p('v_lshl_add_u32 v248, v6, 4, v5')
        p('s_lshl_b32 s44, s44, 3')
        p('v_add_u32 v249, s44, v248')

    def prep_dma():
        p('s_lshl_b32 s56, s8, 12')
        p(f's_add_u32 m0, s56, {L1_PREP}')
        for i in range(4):
            p(f'buffer_load_dwordx4 v{248 + i % 2}, s[16:19], s{45 + i // 2} offen lds ; tag=prep')
            if i < 3:
                p('s_add_u32 m0, m0, 1024')

    def code_prefetch(sfx):
        if not CODEPF:
            return
        p('s_lshr_b32 s56, s2, 3')
        p('s_lshl_b32 s56, s56, 2')
        p('s_add_u32 s56, s56, s8')
        p('s_lshl_b32 s56, s56, 10')
        p('s_cmp_ge_u32 s56, x_code_end-x2_kernel')
        p(f's_cbranch_scc1 q1_cp{sfx}')
        p('s_getpc_b64 s[88:89]')
        p.label(f'q1_pc{sfx}')
        p(f's_add_u32 s88, s88, x2_kernel-q1_pc{sfx}')
        p('s_addc_u32 s89, s89, 0')
        p('v_add_u32 v250, s56, v2')
        p('global_load_dwordx4 v[148:151], v250, s[88:89]')
        p.label(f'q1_cp{sfx}')

    def prep_finish(sfx):
        p('s_cmp_eq_u32 s47, 0')
        p(f's_cbranch_scc1 q1_z{sfx}')
        p('v_lshrrev_b32 v5, 2, v1')
        p('v_lshlrev_b32 v6, 7, v5')
        p('v_and_b32 v7, 3, v1')
        p('v_lshl_add_u32 v6, v7, 3, v6')
        p('s_lshl_b32 s56, s8, 12')
        p(f's_add_u32 s56, s56, {L1_PREP}')
        p('v_add_u32 v6, s56, v6')
        p('v_bfe_u32 v5, v5, 1, 2')
        for nt in range(4):
            p(f'v_xor_b32 v7, {nt}, v5')
            p('v_lshl_add_u32 v7, v7, 5, v6')
            p(f'ds_read_b64_tr_b16 {vr(128 + 4 * nt, 2)}, v7')
            p(f'ds_read_b64_tr_b16 {vr(130 + 4 * nt, 2)}, v7 offset:2048')
        p('s_cmp_eq_u32 s47, 2')
        p(f's_cbranch_scc1 q1_s1{sfx}')
        p('s_cmp_eq_u32 s47, 3')
        p(f's_cbranch_scc1 q1_s0{sfx}')
        p('s_mov_b32 exec_lo, 0')
        p('s_mov_b32 exec_hi, 0xffff0000')
        for nt in range(4):
            p(f'v_mov_b32 v{130 + 4 * nt}, 0')
            p(f'v_mov_b32 v{131 + 4 * nt}, 0')
        p('s_mov_b64 exec, -1')
        p.label(f'q1_s0{sfx}')
        for nt in range(4):
            p(f'buffer_store_dwordx4 {vr(128 + 4 * nt, 4)}, v2, s[4:7], s48 offen offset:{1024 * nt}')
        p(f's_branch q1_z{sfx}')
        p.label(f'q1_s1{sfx}')
        for nt in range(4):
            p('s_lshl_b32 s56, s49, 2')
            p(f's_add_u32 s56, s56, {nt}')
            p('s_mul_i32 s57, s56, 147')
            p('s_lshr_b32 s57, s57, 10')
            p(f's_mul_i32 s57, s57, {KS * 7168 - 7168}')
            p('s_lshl_b32 s56, s56, 10')
            p('s_add_u32 s56, s56, s57')
            p('s_add_u32 s56, s56, s48')
            p(f'buffer_store_dwordx4 {vr(128 + 4 * nt, 4)}, v2, s[4:7], s56 offen')
        p.label(f'q1_z{sfx}')
        p('s_cmp_lt_u32 s2, 252')
        p(f's_cbranch_scc1 q1_e{sfx}')
        p('s_sub_u32 s56, s2, 252')
        p('s_lshl_b32 s56, s56, 2')
        p('s_add_u32 s56, s56, s8')
        p('s_lshl_b32 s56, s56, 10')
        p(f's_add_u32 s56, s56, {WS_CNT}')
        for r in range(4):
            p(f'v_mov_b32 v{144 + r}, 0')
        p('buffer_store_dwordx4 v[144:147], v2, s[4:7], s56 offen')
        p.label(f'q1_e{sfx}')
        endpgm(p)

    prep_setup()
    DEPTH = 4
    p('s_cmp_eq_u32 s54, 7')
    p('s_cbranch_scc1 q1_kv')
    for kv in (False, True):
        if kv:
            p.label('q1_kv')
        qkv_wdma_init(p, kv, 0)
        for G in range(DEPTH):
            for t in xdma(G) + qkv_wdma(p, G, kv, 0, f'g{G}'):
                p(t)
        stamp(p, 1)

        def pre(G, kv=kv):
            p(f';;need g{G}')
            p('s_barrier')
            if G == 0:
                stamp(p, 2)
            if G + DEPTH < 7:
                for t in xdma(G + DEPTH) + qkv_wdma(p, G + DEPTH, kv, 0, f'g{G + DEPTH}'):
                    p(t)
            if G + DEPTH == 7:
                prep_dma()
                code_prefetch('k' if kv else 'q')
        qkv_core(p, kv, True, 0, L1_MISC, None, pre)
        stamp(p, 13)
        prep_finish('k' if kv else 'q')
    p.label('q1_end')
    p('s_endpgm')
    kernels.append(('qkv1_kernel', 256, 256, 102))


X_W1 = 0
X_MISC = 98 * 1024
X_WO = 100 * 1024
X_LDS = 160 * 1024
SC = 'sc1'


def gen_x(p):
    def consts(L):
        l = LAY[L]
        p(f's_mov_b32 s11, {L}')
        for r, k in ((44, 'QF'), (45, 'KV'), (46, 'OF'), (47, 'X1F'), (48, 'ST1'), (49, 'HF'), (50, 'CNT')):
            p(f's_mov_b32 s{r}, {l[k]}')

    entry(p, 'x2_kernel')
    consts(1)
    p(f's_load_dwordx2 s[88:89], s[0:1], {K_WS}')
    p(f's_load_dwordx2 s[90:91], s[0:1], {K_OUT}')
    p(f's_mov_b32 s16, {WS_X2}')
    p('s_mov_b32 s17, 0')
    p('s_branch x_body')
    entry(p, 'x1_kernel')
    consts(0)
    p(f's_load_dwordx2 s[88:89], s[0:1], {K_AX}')
    p(f's_load_dwordx2 s[90:91], s[0:1], {K_WS}')
    p('s_mov_b32 s16, 0')
    p(f's_mov_b32 s17, {WS_X2}')
    p.label('x_body')
    p('s_cmp_ge_u32 s2, 256')
    p('s_cbranch_scc1 x_end')
    p(f's_load_dwordx2 s[92:93], s[0:1], {K_WS}')
    p('s_load_dwordx8 s[68:75], s[0:1], 0')
    p(f's_load_dwordx2 s[76:77], s[0:1], {K_B1}')
    p(f's_load_dwordx2 s[78:79], s[0:1], {K_B2}')
    lane_setup(p)
    p('s_cmp_ge_u32 s10, 7')
    p('s_cselect_b32 s18, 1, 0')
    p('s_mul_i32 s19, s18, 7')
    p('s_sub_u32 s19, s10, s19')
    p('s_cmp_ge_u32 s19, 7')
    p('s_cselect_b32 s19, 0, s19')
    p('s_lshl_b32 s55, s9, 3')
    p('s_lshl_b32 s56, s18, 2')
    p('s_add_u32 s55, s55, s56')
    srd(p, 4, 92, WS_END)

    Q, O, SB, PB, K0, KVR, T = 8, 40, 104, 136, 152, 160, 224
    RING = 4
    p('s_lshl_b32 s56, s9, 17')
    p('s_lshl_b32 s57, s10, 11')
    p('s_add_u32 s56, s56, s57')
    p('s_add_u32 s56, s56, s44')
    p(f'buffer_load_dwordx4 {vr(K0, 4)}, v2, s[4:7], s45 offen')
    p(f'buffer_load_dwordx4 {vr(K0 + 4, 4)}, v2, s[4:7], s45 offen offset:1024')
    for s in range(4):
        p(f's_add_u32 s57, s8, {s}')
        p('s_and_b32 s57, s57, 3')
        p('s_lshl_b32 s57, s57, 15')
        p('s_add_u32 s57, s57, s56')
        p(f'buffer_load_dwordx4 {vr(Q + 8 * s, 4)}, v2, s[4:7], s57 offen')
        p(f'buffer_load_dwordx4 {vr(Q + 8 * s + 4, 4)}, v2, s[4:7], s57 offen offset:1024')
    p('s_lshl_b32 s58, s8, 16')
    p('s_add_u32 s58, s58, s45')

    def kvld(t, j):
        o = [f'buffer_load_dwordx4 {vr(KVR + 16 * (t % RING) + 4 * j, 4)}, v2, s[4:7], s58 offen offset:{1024 * j}']
        if j == 3:
            o.append('s_add_u32 s58, s58, 4096')
        return o

    for t in range(RING - 1):
        for j in range(4):
            for x in kvld(t, j):
                p(x)
    srd(p, 12, 88, 0)
    p(f's_add_u32 s14, s16, {S * D * 2}')
    srd(p, 20, 90, 0)
    p(f's_add_u32 s22, s17, {S * D * 2}')
    srd(p, 24, 76, F * 2)
    srd(p, 28, 78, D * 2)
    srd(p, 32, 70, D * D * 2)
    srd(p, 36, 72, D * DH * 2)
    srd(p, 40, 74, D * DH * 2)
    p('s_mov_b32 s60, 0xffff0000')
    p('s_mov_b32 s61, 0x07060302')
    p('s_mov_b32 s62, 0')
    p('s_mov_b32 s63, -1')
    p(f's_mul_i32 s64, s19, {KB * 4096}')
    p(f's_mul_i32 s65, s8, {14 * 4096}')
    p('s_add_u32 s64, s64, s65')
    p(f's_add_u32 s64, s64, {WS_W2}')
    p('s_lshl_b32 s65, s19, 16')
    p(f's_add_u32 s65, s65, {WS_WO}')
    p(f's_mul_i32 s66, s10, {KS * 7168}')
    p(f's_add_u32 s66, s66, {WS_W1}')
    p(f's_add_u32 s67, s66, {48 * 1024}')
    p('s_lshl_b32 s59, s8, 10')
    p('v_add_u32 v5, s59, v2')
    p(f's_add_u32 m0, s59, {X_WO}')
    p('v_mul_u32_u24 v6, 896, v3')
    p('v_lshl_add_u32 v6, v4, 3, v6')
    p('s_add_u32 s68, s55, s8')
    p('s_mul_i32 s68, s68, 14336')
    p('s_lshl_b32 s69, s19, 7')
    p('s_add_u32 s68, s68, s69')
    p('s_add_u32 s69, s68, s16')
    p('v_bfe_u32 v7, v1, 4, 1')
    p('v_lshlrev_b32 v7, 14, v7')
    p('v_lshl_add_u32 v7, v3, 4, v7')
    p(f'v_lshrrev_b32 v{T}, 5, v1')
    p(f'v_lshl_add_u32 v7, v{T}, 8, v7')
    stamp(p, 1)
    p('s_mov_b64 exec, s[62:63]')
    for s in range(4):
        p(f'v_mov_b32 v{Q + 8 * s + 6}, 0')
        p(f'v_mov_b32 v{Q + 8 * s + 7}, 0')
    p('s_mov_b64 exec, -1')

    def tile_max_ops(sreg, m, t):
        return [f'v_max3_f32 v{m}, v{sreg}, v{sreg + 1}, v{sreg + 2}',
                f'v_max3_f32 v{t}, v{sreg + 3}, v{sreg + 4}, v{sreg + 5}',
                f'v_max3_f32 v{m}, v{m}, v{sreg + 6}, v{sreg + 7}',
                f'v_max3_f32 v{t}, v{t}, v{sreg + 8}, v{sreg + 9}',
                f'v_max3_f32 v{m}, v{m}, v{sreg + 10}, v{sreg + 11}',
                f'v_max3_f32 v{t}, v{t}, v{sreg + 12}, v{sreg + 13}',
                f'v_max3_f32 v{m}, v{m}, v{sreg + 14}, v{sreg + 15}',
                f'v_max_f32 v{m}, v{m}, v{t}']

    def neg_max(slots):
        for (qb, m, t1, t2) in slots:
            p(f'v_mov_b32 v{t1}, v{m}')
        for (qb, m, t1, t2) in slots:
            p(f'v_permlane32_swap_b32 v{m}, v{t1}')
        for (qb, m, t1, t2) in slots:
            p(f'v_max_f32 v{m}, v{m}, v{t1}')
        for (qb, m, t1, t2) in slots:
            p(f'v_sub_f32 v{m}, 0, v{m}')
            p(f'v_and_b32 v{t1}, s60, v{m}')
            p(f'v_sub_f32 v{m}, v{m}, v{t1}')
            p(f'v_and_b32 v{t2}, s60, v{m}')
            p(f'v_sub_f32 v{m}, v{m}, v{t2}')
        p('s_mov_b64 exec, s[62:63]')
        for (qb, m, t1, t2) in slots:
            p(f'v_perm_b32 v{qb + 6}, v{t2}, v{t1}, s61')
            p(f'v_lshrrev_b32 v{qb + 7}, 16, v{m}')
        p('s_mov_b64 exec, -1')

    for s in range(4):
        d = vr(O + 16 * s, 16)
        p(f'{MF32} {d}, {vr(K0, 4)}, {vr(Q + 8 * s, 4)}, 0')
        p(f'{MF32} {d}, {vr(K0 + 4, 4)}, {vr(Q + 8 * s + 4, 4)}, {d}')
    for s in range(4):
        for x in tile_max_ops(O + 16 * s, T + 4 * s, T + 4 * s + 1):
            p(x)
    neg_max([(Q + 8 * s, T + 4 * s, T + 4 * s + 1, T + 4 * s + 2) for s in range(4)])
    stamp(p, 2)

    def s_mfma(u, i):
        kt, s = (u // 4) % RING, u % 4
        d = vr(SB + 16 * (u % 2), 16)
        c = '0' if i == 0 else d
        return f'{MF32} {d}, {vr(KVR + 16 * kt + 4 * i, 4)}, {vr(Q + 8 * s + 4 * i, 4)}, {c}'

    def pv_mfma(u, i):
        kt, s = (u // 4) % RING, u % 4
        d = vr(O + 16 * s, 16)
        c = '0' if (u < 4 and i == 0) else d
        return f'{MF32} {d}, {vr(KVR + 16 * kt + 8 + 4 * i, 4)}, {vr(PB + 8 * (u % 2) + 4 * i, 4)}, {c}'

    pf = []
    for i in range(15):
        pf.append(['buffer_load_dwordx4 v5, s[4:7], s65 offen lds ; tag=wo', 's_add_u32 m0, m0, 4096',
                   's_add_u32 s65, s65, 4096'])
    for nt in range(4):
        pf.append([f'buffer_load_dwordx4 {ar(224 + 4 * nt, 4)}, v2, s[4:7], s65 offen offset:{1024 * nt}'])
    pf[-1].append(f's_add_u32 m0, s59, {48 * 1024}')
    for nt in range(4):
        pf.append([f'buffer_load_dwordx2 {ar(240 + 2 * nt, 2)}, v6, s[12:15], s69 offen offset:{32 * nt}'])
    for i in range(13):
        pf.append(['buffer_load_dwordx4 v5, s[4:7], s67 offen lds ; tag=w1', 's_add_u32 m0, m0, 4096',
                   's_add_u32 s67, s67, 4096'])
    for i in range(14):
        for nt in range(4):
            e = [f'buffer_load_dwordx4 {ar(16 * i + 4 * nt, 4)}, v2, s[4:7], s64 offen offset:{1024 * nt}']
            if nt == 3:
                e.append('s_add_u32 s64, s64, 4096')
            pf.append(e)
    NU = 64
    p(s_mfma(0, 0))
    p(s_mfma(0, 1))
    pfi = 0
    for u in range(NU):
        sb = SB + 16 * (u % 2)
        pb = PB + 8 * (u % 2)
        m = [s_mfma(u + 1, 0) if u + 1 < NU else None, s_mfma(u + 1, 1) if u + 1 < NU else None,
             pv_mfma(u - 1, 0) if u > 0 else None, pv_mfma(u - 1, 1) if u > 0 else None]
        t, j = u // 4, u % 4
        for q in range(4):
            if m[q]:
                p(m[q])
            if q == 3 and t + RING - 1 < 16 and not (t == 0 and False):
                for x in kvld(t + RING - 1, j):
                    p(x)
            if q in (0, 2) or (q == 3 and t + RING - 1 >= 16):
                want = (len(pf) * (3 * u + q + 1) + 3 * 60 - 1) // (3 * 60)
                if pfi < min(want, len(pf)):
                    for x in pf[pfi]:
                        p(x)
                    pfi += 1
            if q == 1:
                if j == 0 and u > 0 or u == 0:
                    pass
                if j == 0:
                    p(f';;use {vr(KVR + 16 * (t % RING) + 8, 8)}')
                if j == 2 and t + 1 < 16:
                    p(f';;use {vr(KVR + 16 * ((t + 1) % RING), 8)}')
            for jj in range(4):
                p(f'v_exp_f32 v{sb + 4 * q + jj}, v{sb + 4 * q + jj}')
            if q > 0:
                p(f'v_cvt_pk_bf16_f32 v{pb + 2 * q - 2}, v{sb + 4 * q - 4}, v{sb + 4 * q - 3}')
                p(f'v_cvt_pk_bf16_f32 v{pb + 2 * q - 1}, v{sb + 4 * q - 2}, v{sb + 4 * q - 1}')
        p(f'v_cvt_pk_bf16_f32 v{pb + 6}, v{sb + 12}, v{sb + 13}')
        p(f'v_cvt_pk_bf16_f32 v{pb + 7}, v{sb + 14}, v{sb + 15}')
    assert pfi == len(pf), (pfi, len(pf))
    p(pv_mfma(NU - 1, 0))
    p(pv_mfma(NU - 1, 1))
    stamp(p, 3)
    for s in range(1, 4):
        p(f's_add_u32 s56, s8, {s}')
        p('s_and_b32 s56, s56, 3')
        p('s_mul_i32 s56, s56, 12288')
        p(f'v_add_u32 v{T}, s56, v2')
        for j in range(4):
            p(f'ds_write_b128 v{T}, {vr(O + 16 * s + 4 * j, 4)} offset:{(s - 1) * 4096 + j * 1024}')
    p('s_mul_i32 s56, s8, 12288')
    p(f'v_add_u32 v{T}, s56, v2')
    p('s_lshl_b32 s56, s9, 17')
    p('s_lshl_b32 s57, s8, 15')
    p('s_add_u32 s56, s56, s57')
    p('s_lshl_b32 s57, s10, 10')
    p('s_add_u32 s56, s56, s57')
    p('s_add_u32 s56, s56, s46')
    p('s_waitcnt lgkmcnt(0)')
    p('s_barrier')
    for s in range(1, 4):
        for j in range(4):
            p(f'ds_read_b128 {vr(O + 16 * s + 4 * j, 4)}, v{T} offset:{(s - 1) * 4096 + j * 1024}')
    for s in range(1, 4):
        for r in range(16):
            p(f'v_add_f32 v{O + r}, v{O + r}, v{O + 16 * s + r}')
    p(f'v_add_f32 v{T}, |v{O}|, |v{O + 1}|')
    p(f'v_add_f32 v{T + 1}, |v{O + 2}|, |v{O + 3}|')
    for r in range(4, 16):
        p(f'v_add_f32 v{T + r % 2}, v{T + r % 2}, |v{O + r}|')
    p(f'v_add_f32 v{T}, v{T}, v{T + 1}')
    p(f'v_mov_b32 v{T + 1}, 0x7f800000')
    p(f'v_cmp_lt_f32 vcc, v{T}, v{T + 1}')
    p('s_cmp_eq_u64 vcc, -1')
    p('s_cbranch_scc0 attn_slow')
    p.label('attn_fin')
    p(f'v_mov_b32 v{T}, v{O + 12}')
    p(f'v_mov_b32 v{T + 1}, v{O + 12}')
    p(f'v_permlane32_swap_b32 v{T}, v{T + 1}')
    p(f'v_rcp_f32 v{T}, v{T + 1}')
    for r in range(16):
        p(f'v_mul_f32 v{O + r}, v{O + r}, v{T}')
    for rq in range(4):
        o = O + 16 + 4 * (rq % 2) + 2 * (rq // 2)
        p(f'v_cvt_pk_bf16_f32 v{o}, v{O + 4 * rq}, v{O + 4 * rq + 1}')
        p(f'v_cvt_pk_bf16_f32 v{o + 1}, v{O + 4 * rq + 2}, v{O + 4 * rq + 3}')
    p(f'buffer_store_dwordx4 {vr(O + 16, 4)}, v7, s[4:7], s56 offen {SC}')
    p(f'buffer_store_dwordx4 {vr(O + 20, 4)}, v7, s[4:7], s56 offen offset:512 {SC}')
    stamp(p, 4)

    def sync(k, nprod, helpers=None):
        p('s_waitcnt vmcnt(0)')
        p('s_barrier')
        p('s_cmp_lg_u32 s8, 0')
        p(f's_cbranch_scc1 sy{k}_h')
        p(f's_add_u32 s56, s9, {16 * k}')
        p('s_lshl_b32 s56, s56, 7')
        p('s_add_u32 s56, s56, s50')
        p('v_mov_b32 v252, 0')
        p('v_mov_b32 v253, 1')
        p('s_mov_b64 exec, 1')
        if nprod < 16:
            p(f's_cmp_ge_u32 s10, {nprod}')
            p(f's_cbranch_scc1 sy{k}_n')
        p('buffer_atomic_add v253, v252, s[4:7], s56 offen sc1')
        p.label(f'sy{k}_n')
        p('s_mov_b32 s57, 200000')
        p.label(f'sy{k}_p')
        p('buffer_load_dword v253, v252, s[4:7], s56 offen sc1')
        p('s_sub_u32 s57, s57, 1')
        p('s_waitcnt vmcnt(0)')
        p('v_readfirstlane_b32 s58, v253')
        p('s_cmp_eq_u32 s57, 0')
        p(f's_cbranch_scc1 sy{k}_q')
        p(f's_cmp_lt_u32 s58, {nprod}')
        p(f's_cbranch_scc1 sy{k}_p')
        p.label(f'sy{k}_q')
        p('s_mov_b64 exec, -1')
        p(f's_branch sy{k}_e')
        p.label(f'sy{k}_h')
        if helpers:
            helpers()
        p.label(f'sy{k}_e')
        p('s_barrier')

    def h_w1():
        p('s_sub_u32 s56, s8, 1')
        p('s_lshl_b32 s56, s56, 14')
        p('s_mov_b32 m0, s56')
        p('s_add_u32 s56, s56, s66')
        for i in range(4):
            for j in range(4):
                p(f'buffer_load_dwordx4 v2, s[4:7], s56 offen offset:{1024 * j} lds')
            if i < 3:
                p('s_add_u32 m0, m0, 4096')
                p('s_add_u32 s56, s56, 4096')

    sync(0, 16, h_w1)
    stamp(p, 5)

    X1K = 244
    p('s_cmp_ge_u32 s10, 14')
    p('s_cbranch_scc1 w_skip')
    XB, ACC, WF = 8, 72, 88
    p('s_add_u32 s56, s55, s8')
    p('s_lshl_b32 s57, s56, 14')
    p('s_add_u32 s57, s57, s46')
    for ks in range(16):
        if ks and ks % 4 == 0:
            p('s_add_u32 s57, s57, 4096')
        p(f'buffer_load_dwordx4 {vr(XB + 4 * ks, 4)}, v2, s[4:7], s57 offen offset:{1024 * (ks % 4)} {SC}')
    p(f'v_add_u32 v5, {X_WO}, v2')
    NBW = 3

    def wrd(ks):
        return [f'ds_read_b128 {vr(WF + 16 * (ks % NBW) + 4 * nt, 4)}, v5 offset:{(ks * 4 + nt) * 1024}' for nt in range(4)]
    for x in wrd(0) + wrd(1):
        p(x)
    p('s_mov_b32 s60, 0xffff0000')
    for j in range(8):
        p(f'v_accvgpr_read_b32 v{140 + j}, a{240 + j}')
    for j in range(8):
        p(f'v_lshlrev_b32 v{ACC + 2 * j}, 16, v{140 + j}')
        p(f'v_and_b32 v{ACC + 2 * j + 1}, s60, v{140 + j}')
    p('s_mul_i32 s57, s56, 14336')
    p('s_lshl_b32 s58, s19, 11')
    p('s_add_u32 s57, s57, s58')
    p('s_add_u32 s57, s57, s47')
    p('s_lshl_b32 s58, s56, 10')
    p('s_lshl_b32 s59, s19, 7')
    p('s_add_u32 s58, s58, s59')
    p('s_add_u32 s58, s58, s48')
    p('v_lshlrev_b32 v6, 3, v3')
    for ks in range(16):
        mf = []
        for nt in range(4):
            a = vr(WF + 16 * (ks % NBW) + 4 * nt, 4) if ks < 15 else ar(224 + 4 * nt, 4)
            d = vr(ACC + 4 * nt, 4)
            mf.append(f'{MF16} {d}, {a}, {vr(XB + 4 * ks, 4)}, {d}')
        for x in interleave(mf, wrd(ks + 2) if ks + 2 < 15 else []):
            p(x)
    stamp(p, 6)
    for j in range(8):
        p(f'v_cvt_pk_bf16_f32 v{X1K + j}, v{ACC + 2 * j}, v{ACC + 2 * j + 1}')
    p(f'buffer_store_dwordx4 {vr(X1K, 4)}, v2, s[4:7], s57 offen {SC}')
    p(f'buffer_store_dwordx4 {vr(X1K + 4, 4)}, v2, s[4:7], s57 offen offset:1024 {SC}')
    for j in range(8):
        p(f'v_lshlrev_b32 v{ACC + 2 * j}, 16, v{X1K + j}')
        p(f'v_and_b32 v{ACC + 2 * j + 1}, s60, v{X1K + j}')
    p(f'v_add_f32 v8, v{ACC}, v{ACC + 1}')
    p(f'v_mul_f32 v9, v{ACC}, v{ACC}')
    p(f'v_add_f32 v10, v{ACC + 2}, v{ACC + 3}')
    p(f'v_mul_f32 v11, v{ACC + 1}, v{ACC + 1}')
    for r in range(2, 16):
        if r >= 4:
            p(f'v_add_f32 v{8 + 2 * (r % 2)}, v{8 + 2 * (r % 2)}, v{ACC + r}')
        p(f'v_fmac_f32 v{9 + 2 * (r % 2)}, v{ACC + r}, v{ACC + r}')
    p('v_add_f32 v8, v8, v10')
    p('v_add_f32 v9, v9, v11')
    allreduce_g2(p, 8, 10, 9, 11)
    p('s_mov_b64 exec, 0xffff')
    p(f'buffer_store_dwordx2 v[8:9], v6, s[4:7], s58 offen {SC}')
    p('s_mov_b64 exec, -1')
    p.label('w_skip')

    def h_cs():
        for r in range(4):
            p(f'v_mov_b32 v{8 + r}, {ONES}')
        p('s_sub_u32 s56, s8, 1')
        p('s_lshl_b32 s57, s56, 10')
        p('v_add_u32 v5, s57, v2')
        p('v_add_u32 v6, 0xc400, v5')
        NBC = 4

        def rd(ks):
            va, k2 = ('v5', ks) if ks < 7 else ('v6', ks - 7)
            return [f'ds_read_b128 {vr(24 + 12 * (ks % NBC) + 4 * i, 4)}, {va} offset:{k2 * 7168 + i * 3072}' for i in range(3)]
        for ks in range(NBC - 1):
            for x in rd(ks):
                p(x)
        for ks in range(KS):
            mf = []
            for i in range(3):
                d = vr(12 + 4 * i, 4)
                mf.append(f'{MF16} {d}, {vr(24 + 12 * (ks % NBC) + 4 * i, 4)}, v[8:11], {"0" if ks == 0 else d}')
            for x in interleave(mf, rd(ks + NBC - 1) if ks + NBC - 1 < KS else []):
                p(x)
        p('s_lshl_b32 s57, s56, 6')
        p(f's_add_u32 s57, s57, {X_MISC}')
        p('v_lshl_add_u32 v5, v4, 4, s57')
        for i in range(3):
            p(f'ds_write_b128 v5, {vr(12 + 4 * i, 4)} offset:{192 * i}')
        p('s_waitcnt lgkmcnt(0)')

    BP = 226
    p('s_mul_i32 s59, s10, 224')
    p('v_lshlrev_b32 v7, 3, v4')
    for nt in range(7):
        p(f'buffer_load_dwordx2 {vr(BP + 2 * nt, 2)}, v7, s[24:27], s59 offen offset:{32 * nt}')
    sync(1, 14, h_cs)
    stamp(p, 7)

    XB, ACC, WF = 8, 120, 176
    TM = 208
    KC = 240
    p('s_lshl_b32 s56, s9, 3')
    p('s_lshl_b32 s57, s8, 1')
    p('s_add_u32 s56, s56, s57')
    p('s_lshl_b32 s57, s56, 10')
    p('s_add_u32 s57, s57, s48')
    p('v_lshlrev_b32 v5, 3, v3')
    p('v_lshl_add_u32 v5, v4, 8, v5')
    for m in range(2):
        p(f'buffer_load_dwordx2 {vr(TM + 4 * m, 2)}, v5, s[4:7], s57 offen offset:{1024 * m} {SC}')
        p(f'buffer_load_dwordx2 {vr(TM + 4 * m + 2, 2)}, v5, s[4:7], s57 offen offset:{1024 * m + 128} {SC}')
    p('s_mul_i32 s57, s56, 14336')
    p('s_add_u32 s57, s57, s47')
    p('s_add_u32 s58, s57, 14336')

    def xld(ks):
        o = []
        if ks and ks % 4 == 0:
            o += ['s_add_u32 s57, s57, 4096', 's_add_u32 s58, s58, 4096']
        o.append(f'buffer_load_dwordx4 {vr(XB + 4 * ks, 4)}, v2, s[4:7], s57 offen offset:{1024 * (ks % 4)} {SC}')
        o.append(f'buffer_load_dwordx4 {vr(XB + 56 + 4 * ks, 4)}, v2, s[4:7], s58 offen offset:{1024 * (ks % 4)} {SC}')
        return o
    XD = 7
    for ks in range(XD):
        for x in xld(ks):
            p(x)
    p('v_lshlrev_b32 v5, 4, v4')
    p(f'v_add_u32 v5, {X_MISC}, v5')
    for nt in range(7):
        p(f'ds_read_b128 {vr(ACC + 4 * nt, 4)}, v5 offset:{64 * nt}')
    p('v_add_u32 v6, 0xc400, v2')
    p('v_cmp_eq_u32 vcc, 3, v4')
    for m in range(2):
        b = TM + 4 * m
        p(f'v_cndmask_b32 v{b + 2}, v{b + 2}, 0, vcc')
        p(f'v_cndmask_b32 v{b + 3}, v{b + 3}, 0, vcc')
        p(f'v_add_f32 v{b}, v{b}, v{b + 2}')
        p(f'v_add_f32 v{b + 1}, v{b + 1}, v{b + 3}')
        allreduce_g2(p, b, b + 2, b + 1, b + 3)
        var_from(p, b, b + 1, b + 2, b + 3)
        p(f'v_rsq_f32 v{b}, v{b + 3}')
        p(f'v_mul_f32 v{252 + m}, v{b + 3}, v{b}')
    C0 = -2.0 * math.sqrt(2.0 / math.pi) * math.log2(math.e)
    for m in range(2):
        b = TM + 4 * m
        p(f'v_mul_f32 v{KC + 2 * m}, {f32(C0)}, v{b}')
        p(f'v_mul_f32 v{b + 1}, v{b}, v{b}')
        p(f'v_mul_f32 v{b + 1}, {f32(0.044715)}, v{b + 1}')
        p(f'v_mul_f32 v{KC + 2 * m + 1}, v{b + 1}, v{KC + 2 * m}')
    p('s_mov_b32 s60, 0xffff0000')
    for j in range(14):
        for h in range(2):
            i = 2 * j + h
            t = TM + 8 + (i % 4)
            if h == 0:
                p(f'v_lshlrev_b32 v{t}, 16, v{BP + j}')
            else:
                p(f'v_and_b32 v{t}, s60, v{BP + j}')
            p(f'v_mul_f32 v{ACC + 28 + i}, v{TM + 6}, v{ACC + i}')
            p(f'v_mul_f32 v{ACC + i}, v{TM + 2}, v{ACC + i}')
            p(f'v_fma_f32 v{ACC + 28 + i}, v{t}, v253, -v{ACC + 28 + i}')
            p(f'v_fma_f32 v{ACC + i}, v{t}, v252, -v{ACC + i}')
    p('s_lshr_b32 s59, s10, 1')
    p('s_mul_i32 s59, s59, 7168')
    p(f's_mul_i32 s61, s56, {KB * 1024}')
    p('s_add_u32 s59, s59, s61')
    p('s_add_u32 s59, s59, s49')
    p('s_and_b32 s61, s10, 1')
    p('s_mul_i32 s62, s61, 3072')
    p('s_add_u32 s62, s62, s59')
    p(f's_add_u32 s63, s62, {KB * 1024}')
    p('s_lshl_b32 s61, s61, 3')
    p('s_add_u32 s61, s61, s59')
    p('s_add_u32 s64, s61, 6144')
    p(f's_add_u32 s65, s64, {KB * 1024}')

    def f1_stream(tiles, with_x):
        n = len(tiles)
        nb = 32 // (4 * n) if n > 1 else 4
        nb = min(nb, 4)

        def rd(ks):
            va, k2 = ('v2', ks) if ks < 7 else ('v6', ks - 7)
            return [f'ds_read_b128 {vr(WF + 4 * n * (ks % nb) + 4 * i, 4)}, {va} offset:{k2 * 7168 + t * 1024}'
                    for i, t in enumerate(tiles)]
        head = []
        for ks in range(nb - 1):
            head += rd(ks)
        out = []
        for ks in range(KS):
            mf = []
            for i, t in enumerate(tiles):
                for m in range(2):
                    d = vr(ACC + 28 * m + 4 * t, 4)
                    mf.append(f'{MF16} {d}, {vr(WF + 4 * n * (ks % nb) + 4 * i, 4)}, {vr(XB + 56 * m + 4 * ks, 4)}, {d}')
            sec = rd(ks + nb - 1) if ks + nb - 1 < KS else []
            if with_x and ks + XD < KS:
                sec = sec + xld(ks + XD)
            out += interleave(mf, sec)
        return head, out

    def gelu(tiles):
        o = []
        for m in range(2):
            k0, k1, sg = KC + 2 * m, KC + 2 * m + 1, 252 + m
            for t in tiles:
                a = ACC + 28 * m + 4 * t
                tt = TM + 4 * ((t + m) % 4)
                for r in range(4):
                    o.append(f'v_mul_f32 v{tt + r}, v{a + r}, v{a + r}')
                for r in range(4):
                    o.append(f'v_fma_f32 v{tt + r}, v{tt + r}, v{k1}, v{k0}')
                for r in range(4):
                    o.append(f'v_mul_f32 v{tt + r}, v{tt + r}, v{a + r}')
                for r in range(4):
                    o.append(f'v_exp_f32 v{tt + r}, v{tt + r}')
                for r in range(4):
                    o.append(f'v_fma_f32 v{tt + r}, v{tt + r}, v{sg}, v{sg}')
                for r in range(4):
                    o.append(f'v_rcp_f32 v{tt + r}, v{tt + r}')
                for r in range(4):
                    o.append(f'v_mul_f32 v{a + r}, v{a + r}, v{tt + r}')
                q = ACC + 28 * m + 8 * (t // 2) + 2 * (t % 2)
                o.append(f'v_cvt_pk_bf16_f32 v{q}, v{a}, v{a + 1}')
                o.append(f'v_cvt_pk_bf16_f32 v{q + 1}, v{a + 2}, v{a + 3}')
                if t % 2 == 1:
                    o.append(f'buffer_store_dwordx4 {vr(q - 2, 4)}, v2, s[4:7], s{62 + m} offen offset:{1024 * (t // 2)} {SC}')
                if t == 6:
                    o.append(f'buffer_store_dwordx2 {vr(q, 2)}, v2, s[4:7], s{64 + m} offen {SC}')
        return o

    h0, b0 = f1_stream([0, 1, 2, 3], True)
    for x in h0 + b0:
        p(x)
    stamp(p, 8)
    h1, b1 = f1_stream([4, 5], False)
    for x in h1:
        p(x)
    p('s_cmp_eq_u32 s11, 1')
    p('s_cbranch_scc1 f1_nq')
    p('s_and_b32 s54, s10, 7')
    p('s_mov_b32 s66, s62')
    p('s_mov_b32 s67, s63')
    p('v_mov_b32 v224, v6')
    p('v_mov_b32 v226, v240')
    p('v_mov_b32 v227, v241')
    p('v_mov_b32 v228, v242')
    p('v_mov_b32 v229, v243')
    qkv_wdma_setup(p)
    p('s_cmp_eq_u32 s54, 7')
    p('s_cbranch_scc1 f1_kv')
    qkv_wdma_init(p, False, X_WO)
    for G in range(7):
        for x in qkv_wdma(p, G, False, X_WO, 'wq'):
            p(x)
    p('s_branch f1_q2')
    p.label('f1_kv')
    qkv_wdma_init(p, True, X_WO)
    for G in range(7):
        for x in qkv_wdma(p, G, True, X_WO, 'wq'):
            p(x)
    p.label('f1_q2')
    p('s_mov_b32 s62, s66')
    p('s_mov_b32 s63, s67')
    p('v_mov_b32 v6, v224')
    p('v_mov_b32 v240, v226')
    p('v_mov_b32 v241, v227')
    p('v_mov_b32 v242, v228')
    p('v_mov_b32 v243, v229')
    p.label('f1_nq')
    for x in interleave(b1, gelu([0, 1, 2, 3])):
        p(x)
    h2, b2 = f1_stream([6], False)
    for x in h2:
        p(x)
    for x in interleave(b2, gelu([4, 5]), start=2):
        p(x)
    stamp(p, 9)
    for x in gelu([6]):
        p(x)
    p('s_lshl_b32 s59, s19, 7')
    p('v_lshlrev_b32 v7, 3, v4')
    for nt in range(4):
        p(f'buffer_load_dwordx2 {vr(236 + 2 * nt, 2)}, v7, s[28:31], s59 offen offset:{32 * nt}')
    sync(2, 16)
    stamp(p, 10)

    p('s_cmp_ge_u32 s10, 14')
    p('s_cbranch_scc1 f2_skip')
    ACC, HR = 8, 72
    RB = 10
    HD = 5
    p('s_mul_i32 s56, s8, 14336')
    p(f's_mul_i32 s57, s55, {KB * 1024}')
    p('s_add_u32 s56, s56, s57')
    p('s_add_u32 s56, s56, s49')
    for s in range(4):
        p(f's_add_u32 s57, s8, {s}')
        p('s_and_b32 s57, s57, 3')
        p(f's_mul_i32 s57, s57, {KB * 1024}')
        p(f'v_add_u32 v{232 + s}, s57, v2')

    def hld(i):
        o = []
        if i and i % 4 == 0:
            o.append('s_add_u32 s56, s56, 4096')
        for s in range(4):
            o.append(f'buffer_load_dwordx4 {vr(HR + 16 * (i % RB) + 4 * s, 4)}, v{232 + s}, s[4:7], s56 offen offset:{1024 * (i % 4)} {SC}')
        return o
    for i in range(HD):
        for x in hld(i):
            p(x)
    p('s_mov_b32 s60, 0xffff0000')
    for j in range(8):
        p(f'v_lshlrev_b32 v{ACC + 2 * j}, 16, v{X1K + j}')
        p(f'v_and_b32 v{ACC + 2 * j + 1}, s60, v{X1K + j}')
        p(f'v_lshlrev_b32 v{ACC + 16 + 2 * j}, 16, v{236 + j}')
        p(f'v_and_b32 v{ACC + 17 + 2 * j}, s60, v{236 + j}')
    for r in range(16):
        p(f'v_add_f32 v{ACC + r}, v{ACC + r}, v{ACC + 16 + r}')
    for i in range(14):
        mf = []
        for s in range(4):
            for nt in range(4):
                d = vr(ACC + 16 * s + 4 * nt, 4)
                c = '0' if (i == 0 and s > 0) else d
                mf.append(f'{MF16} {d}, {ar(16 * i + 4 * nt, 4)}, {vr(HR + 16 * (i % RB) + 4 * s, 4)}, {c}')
        for x in interleave(mf, hld(i + HD) if i + HD < 14 else []):
            p(x)
    stamp(p, 11)
    for s in range(1, 4):
        p(f's_add_u32 s56, s8, {s}')
        p('s_and_b32 s56, s56, 3')
        p('s_mul_i32 s56, s56, 12288')
        p('v_add_u32 v5, s56, v2')
        for j in range(4):
            p(f'ds_write_b128 v5, {vr(ACC + 16 * s + 4 * j, 4)} offset:{(s - 1) * 4096 + j * 1024}')
    p('s_mul_i32 s56, s8, 12288')
    p('v_add_u32 v5, s56, v2')
    p('v_lshrrev_b32 v6, 1, v4')
    p('v_and_b32 v7, 1, v4')
    p('v_lshl_or_b32 v6, v7, 1, v6')
    p('v_mul_u32_u24 v7, 896, v3')
    p('v_lshl_add_u32 v7, v6, 4, v7')
    p('v_lshlrev_b32 v6, 8, v6')
    p('v_lshl_add_u32 v6, v3, 4, v6')
    p('s_add_u32 s57, s68, s17')
    p('s_add_u32 s58, s55, s8')
    p('s_mul_i32 s58, s58, 14336')
    p('s_lshl_b32 s59, s19, 11')
    p('s_add_u32 s58, s58, s59')
    p(f's_add_u32 s58, s58, {WS_X2N}')
    p('s_waitcnt lgkmcnt(0)')
    p('s_barrier')
    for s in range(1, 4):
        for j in range(4):
            p(f'ds_read_b128 {vr(ACC + 16 * s + 4 * j, 4)}, v5 offset:{(s - 1) * 4096 + j * 1024}')
    for s in range(1, 4):
        for r in range(16):
            p(f'v_add_f32 v{ACC + r}, v{ACC + r}, v{ACC + 16 * s + r}')
    for j in range(8):
        p(f'v_cvt_pk_bf16_f32 v{72 + j}, v{ACC + 2 * j}, v{ACC + 2 * j + 1}')
    for pp in range(2):
        p(f'v_permlane16_swap_b32 v{72 + 4 * pp}, v{74 + 4 * pp}')
        p(f'v_permlane16_swap_b32 v{73 + 4 * pp}, v{75 + 4 * pp}')
    p('s_cmp_eq_u32 s11, 1')
    p('s_cbranch_scc1 f2_out')
    for pp in range(2):
        p(f'buffer_store_dwordx4 {vr(72 + 4 * pp, 4)}, v6, s[4:7], s58 offen offset:{1024 * pp} {SC}')
    p.label('f2_out')
    for pp in range(2):
        p(f'buffer_store_dwordx4 {vr(72 + 4 * pp, 4)}, v7, s[20:23], s57 offen offset:{64 * pp}')
    p.label('f2_skip')
    p('s_cmp_eq_u32 s11, 1')
    p('s_cbranch_scc1 x_fin')
    sync(3, 14)
    stamp(p, 14)

    p(f's_mov_b32 s51, {LAY[1]["QF"]}')
    p(f's_mov_b32 s52, {LAY[1]["KV"]}')
    p('s_lshr_b32 s53, s10, 3')
    p('s_lshl_b32 s53, s53, 2')
    p('s_lshl_b32 s56, s9, 3')
    p('s_add_u32 s53, s53, s56')
    p('s_add_u32 s53, s53, s8')
    p('s_and_b32 s54, s10, 7')
    XR = 128
    p('s_mul_i32 s56, s53, 14336')
    p(f's_add_u32 s56, s56, {WS_X2N}')
    for ks in range(KS):
        if ks and ks % 4 == 0:
            p('s_add_u32 s56, s56, 4096')
        p(f'buffer_load_dwordx4 {vr(XR + 4 * ks, 4)}, v2, s[4:7], s56 offen offset:{1024 * (ks % 4)} {SC}')
    p('s_cmp_eq_u32 s54, 7')
    p('s_cbranch_scc1 xq_kv')
    qkv_core(p, False, False, X_WO, X_MISC, XR)
    p('s_branch x_fin')
    p.label('xq_kv')
    qkv_core(p, True, False, X_WO, X_MISC, XR)
    p.label('x_fin')
    endpgm(p)
    p.label('x_end')
    p('s_endpgm')

    p.label('attn_slow')
    p('s_mov_b64 exec, s[62:63]')
    p(f'v_mov_b32 v{Q + 6}, 0')
    p(f'v_mov_b32 v{Q + 7}, 0')
    p('s_mov_b64 exec, -1')
    p(f'v_mov_b32 v{T + 8}, 0xff800000')
    p('s_mov_b32 s58, s45')
    p('s_mov_b32 s57, 64')
    p.label('attn_slow1')
    p(f'buffer_load_dwordx4 {vr(KVR, 4)}, v2, s[4:7], s58 offen')
    p(f'buffer_load_dwordx4 {vr(KVR + 4, 4)}, v2, s[4:7], s58 offen offset:1024')
    p('s_add_u32 s58, s58, 4096')
    p(f'{MF32} {vr(SB, 16)}, {vr(KVR, 4)}, {vr(Q, 4)}, 0')
    p(f'{MF32} {vr(SB, 16)}, {vr(KVR + 4, 4)}, {vr(Q + 4, 4)}, {vr(SB, 16)}')
    for x in tile_max_ops(SB, T, T + 1):
        p(x)
    p(f'v_max_f32 v{T + 8}, v{T + 8}, v{T}')
    p('s_sub_u32 s57, s57, 1')
    p('s_cmp_lg_u32 s57, 0')
    p('s_cbranch_scc1 attn_slow1')
    neg_max([(Q, T + 8, T + 1, T + 2)])
    for r in range(16):
        p(f'v_mov_b32 v{O + r}, 0')
    p('s_mov_b32 s58, s45')
    p('s_mov_b32 s57, 64')
    p.label('attn_slow2')
    for j in range(4):
        for x in kvld(0, j):
            p(x)
    p(f'{MF32} {vr(SB, 16)}, {vr(KVR, 4)}, {vr(Q, 4)}, 0')
    p(f'{MF32} {vr(SB, 16)}, {vr(KVR + 4, 4)}, {vr(Q + 4, 4)}, {vr(SB, 16)}')
    for r in range(16):
        p(f'v_exp_f32 v{SB + r}, v{SB + r}')
    for r in range(8):
        p(f'v_cvt_pk_bf16_f32 v{PB + r}, v{SB + 2 * r}, v{SB + 2 * r + 1}')
    p(f'{MF32} {vr(O, 16)}, {vr(KVR + 8, 4)}, {vr(PB, 4)}, {vr(O, 16)}')
    p(f'{MF32} {vr(O, 16)}, {vr(KVR + 12, 4)}, {vr(PB + 4, 4)}, {vr(O, 16)}')
    p('s_sub_u32 s57, s57, 1')
    p('s_cmp_lg_u32 s57, 0')
    p('s_cbranch_scc1 attn_slow2')
    p('s_branch attn_fin')
    p('.p2align 10')
    p.label('x_code_end')
    p('s_endpgm')
    for k in ('x1_kernel', 'x2_kernel'):
        kernels.append((k, 512, 256, 102))


def main():
    p = Prog()
    gen_qkv1(p)
    gen_x(p)
    p.finish()
    launches = [('qkv1_kernel', 256, 256, L1_LDS), ('x1_kernel', 256, 256, X_LDS), ('x2_kernel', 256, 256, X_LDS)]
    out = ['; generated by gen/gen2.py (hand-written generator); see that script for the data layouts']
    for (k, g, b, l) in launches:
        out.append(f'; @launch kernel={k} grid=({g},1,1) block=({b},1,1) lds={l}')
    out.append('.amdgcn_target "amdgcn-amd-amdhsa--gfx950"')
    out.append('.text')
    out.append(p.text())
    out.append('.section .rodata,"a"')
    for (k, nv, acc, ns) in kernels:
        out.append('.p2align 6')
        out.append(f'.amdhsa_kernel {k}')
        out.append(f'  .amdhsa_next_free_vgpr {nv}')
        out.append(f'  .amdhsa_next_free_sgpr {ns}')
        out.append(f'  .amdhsa_accum_offset {acc}')
        out.append('  .amdhsa_group_segment_fixed_size 0')
        out.append('  .amdhsa_kernarg_size 104')
        out.append('  .amdhsa_user_sgpr_count 2')
        out.append('  .amdhsa_user_sgpr_kernarg_segment_ptr 1')
        out.append('  .amdhsa_system_sgpr_workgroup_id_x 1')
        out.append('.end_amdhsa_kernel')
    dst = sys.argv[1] if len(sys.argv) > 1 else f'cdna_kernels/{NAME}.s'
    open(dst, 'w').write('\n'.join(out) + '\n')
    json.dump(dict(V=2, WO=WS_WO, W1=WS_W1, W2=WS_W2, X2=WS_X2, X2N=WS_X2N, LAY=LAY, END=WS_END),
              open('layout.json', 'w'))
    print('wrote', dst, 'ws bytes', WS_END, 'max regs', p.max_regs(), 'instrs', len(p.ins))


if __name__ == '__main__':
    main()
```
